```python
import torch

def _softmax(x, axis=-1):
    return torch.softmax(x, dim=axis)
def _gelu(x):
    return torch.nn.functional.gelu(x, approximate="tanh")
def _silu(x):
    return torch.nn.functional.silu(x)
def _sigmoid(x):
    return torch.sigmoid(x)
def _layernorm(x, axis=-1, eps=1e-5):
    m = x.mean(dim=axis, keepdim=True)
    v = x.var(dim=axis, keepdim=True, unbiased=False)
    return (x - m) / torch.sqrt(v + eps)
def _scatter_add(tgt, idx, src, axis=0):
    return tgt.clone().index_add_(axis, idx, src)
def _segment_sum(src, seg, n):
    out = torch.zeros((n,) + src.shape[1:], dtype=src.dtype)
    return out.index_add_(0, seg, src)
def _pad(x, pw):
    flat = tuple(v for pair in reversed(pw) for v in pair)
    return torch.nn.functional.pad(x, flat)

kernel_name = 'recurrent_scan__sliding_local_dilated__dense_activation_gelu__prompt'

def setup_inputs():

    _w = (lambda a: (lambda t: t.to(torch.bfloat16) if t.is_floating_point() else t)(torch.as_tensor(a)))
    def _A_setup():
        B, S, D = 1, 2048, 576
        return {
            "x": _w((lambda *s: torch.randn(*s, dtype=torch.bfloat16) * 0.05)(B, S, D)),
            "wqkv": _w((lambda *s: torch.randn(*s, dtype=torch.bfloat16) * 0.2)(D, 3 * D)),
            "wo": _w((lambda *s: torch.randn(*s, dtype=torch.bfloat16) * 0.2)(D, D)),
        }
    _A_in = _A_setup()

    def _B_setup():
        B, S, D, F = 1, 2048, 576, 4608
        return {
            "x": _w((lambda *s: torch.randn(*s, dtype=torch.bfloat16) * 0.05)(B, S, D)),
            "w1": _w((lambda *s: torch.randn(*s, dtype=torch.bfloat16) * 0.8)(D, F) * (D ** -0.5)),
            "b1": _w((lambda *s: torch.randn(*s, dtype=torch.bfloat16) * 0.8)(F) * 0.01),
            "w2": _w((lambda *s: torch.randn(*s, dtype=torch.bfloat16) * 0.1)(F, D) * (F ** -0.5)),
            "b2": _w((lambda *s: torch.randn(*s, dtype=torch.bfloat16) * 0.1)(D) * 0.01),
        }
    _B_in = _B_setup()

    return {
        "A_x": _A_in["x"],
        "A_wqkv": _A_in["wqkv"],
        "A_wo": _A_in["wo"],
        "B_x": _B_in["x"],
        "B_w1": _B_in["w1"],
        "B_b1": _B_in["b1"],
        "B_w2": _B_in["w2"],
        "B_b2": _B_in["b2"],
    }

def reference(A_x, A_wqkv, A_wo, B_x, B_w1, B_b1, B_w2, B_b2):
    def _A_ref(x, wqkv, wo):
        B, S, D = x.shape
        H = 32; Dh = D // H
        W, dil = 8, 2
        qkv = (lambda x, *d: x.permute(*d))((x @ wqkv).reshape(B, S, 3, H, Dh), 2, 0, 3, 1, 4)
        q, k, v = qkv[0], qkv[1], qkv[2]
        scale = Dh ** -0.5
        pos = torch.arange(S)
        off = torch.arange(W) * dil
        idx = pos[:, None] - off[None, :]
        mask = idx >= 0
        idx_c = torch.where(mask, idx, 0).reshape(-1)
        kg = k[:, :, idx_c, :].reshape(B, H, S, W, Dh)
        vg = v[:, :, idx_c, :].reshape(B, H, S, W, Dh)
        logits = torch.einsum("bhsd,bhswd->bhsw", q, kg) * scale
        logits = torch.where(mask[None, None, :, :], logits, -1e9)
        attn = _softmax(logits, axis=-1)
        o = torch.einsum("bhsw,bhswd->bhsd", attn, vg)
        return (lambda x, *d: x.permute(*d))(o, 0, 2, 1, 3).reshape(B, S, D) @ wo

    def _B_ref(x, w1, b1, w2, b2):
        h = torch.einsum("bsd,df->bsf", x, w1) + b1
        h = _gelu(h)
        return torch.einsum("bsf,fd->bsd", h, w2) + b2

    x = A_x
    xn = _layernorm(x, axis=-1)
    s = _A_ref(xn, A_wqkv, A_wo)
    g = _silu(_B_ref(xn, B_w1, B_b1, B_w2, B_b2))
    return x + s * g
```

```python
import sys, math

NAME = "recurrent_scan__sliding_local_dilated__dense_activation_gelu__prompt"
S, D, F, H, DH = 2048, 576, 4608, 32, 18
WS_XN = 0x0
WS_QKV = 0x400000
WS_H = 0x1000000
WS_O = 0x2400000
WS_S = 0x2800000
WS_PART = 0x3000000
IN_X, IN_WQKV, IN_WO, IN_BX, IN_W1, IN_B1, IN_W2, IN_B2, P_OUT, P_DBG, P_WS = range(11)


class K:
    def __init__(self, name):
        self.name = name
        self.lines = []
        self.nlabel = 0

    def __call__(self, s):
        for ln in s.strip().split("\n"):
            ln = ln.strip()
            if ln:
                self.lines.append("    " + ln)

    def label(self, l):
        self.lines.append(l + ":")

    def newlabel(self, base="L"):
        self.nlabel += 1
        return "%s_%s_%d" % (base, self.name, self.nlabel)

    def load_ptr(self, slot, sd):
        self("s_load_dwordx2 s[%d:%d], s[0:1], %d" % (sd, sd + 1, slot * 8))

    def srd(self, sd, sbase, nbytes, off=0):
        if off:
            self("s_add_u32 s%d, s%d, 0x%x" % (sd, sbase, off))
            self("s_addc_u32 s%d, s%d, 0" % (sd + 1, sbase + 1))
        else:
            self("s_mov_b32 s%d, s%d" % (sd, sbase))
            self("s_mov_b32 s%d, s%d" % (sd + 1, sbase + 1))
        self("s_mov_b32 s%d, 0x%x" % (sd + 2, nbytes))
        self("s_mov_b32 s%d, 0x00020000" % (sd + 3))

    def text(self, vgpr, sgpr=96, accum=None):
        accum = accum if accum is not None else ((vgpr + 3) // 4) * 4
        out = [".globl %s" % self.name, ".p2align 8", ".type %s,@function" % self.name, "%s:" % self.name]
        out += self.lines
        out += ["    s_endpgm"]
        desc = [".amdhsa_kernel %s" % self.name,
                "  .amdhsa_next_free_vgpr %d" % vgpr,
                "  .amdhsa_next_free_sgpr %d" % sgpr,
                "  .amdhsa_accum_offset %d" % accum,
                "  .amdhsa_group_segment_fixed_size 0",
                "  .amdhsa_kernarg_size 88",
                "  .amdhsa_user_sgpr_count 2",
                "  .amdhsa_user_sgpr_kernarg_segment_ptr 1",
                "  .amdhsa_system_sgpr_workgroup_id_x 1",
                ".end_amdhsa_kernel"]
        return "\n".join(out), "\n".join(desc)


def rne_bf16(k, dst, src, tmp):
    k("v_cvt_pk_bf16_f32 v%d, v%d, v%d" % (tmp, src, src))
    k("v_lshlrev_b32 v%d, 16, v%d" % (dst, tmp))


def wave_sum(k, v, tmp, sdst):
    for off in (0x041F, 0x081F, 0x101F, 0x201F, 0x401F):
        k("ds_swizzle_b32 v%d, v%d offset:0x%x" % (tmp, v, off))
        k("s_waitcnt lgkmcnt(0)")
        k("v_add_f32 v%d, v%d, v%d" % (v, v, tmp))
    k("s_nop 0")
    k("v_readlane_b32 s%d, v%d, 32" % (sdst, v))
    k("s_nop 1")
    k("v_add_f32 v%d, s%d, v%d" % (tmp, sdst, v))
    k("s_nop 0")
    k("v_readlane_b32 s%d, v%d, 0" % (sdst, tmp))
    k("s_nop 1")


def gen_ln():
    k = K("ln_kernel")
    k("s_cmp_ge_u32 s2, 512")
    lend = k.newlabel("end")
    k("s_cbranch_scc1 %s" % lend)
    k.load_ptr(IN_X, 4)
    k.load_ptr(P_WS, 6)
    k("s_waitcnt lgkmcnt(0)")
    k.srd(8, 4, S * D * 2)
    k.srd(12, 6, S * D * 2, WS_XN)
    k("""
    v_lshrrev_b32 v1, 6, v0
    s_nop 0
    v_readfirstlane_b32 s16, v1
    s_lshl_b32 s17, s2, 2
    s_add_u32 s16, s16, s17
    s_mul_i32 s16, s16, 1152
    v_and_b32 v1, 63, v0
    v_lshlrev_b32 v2, 5, v1
    v_cmp_gt_u32 vcc, 36, v1
    s_and_saveexec_b64 s[20:21], vcc
    buffer_load_dwordx4 v[4:7], v2, s[8:11], s16 offen
    buffer_load_dwordx4 v[8:11], v2, s[8:11], s16 offen offset:16
    s_mov_b64 exec, s[20:21]
    """)
    for i in range(16):
        k("v_mov_b32 v%d, 0" % (16 + i))
    k("s_waitcnt vmcnt(0)")
    k("s_and_saveexec_b64 s[20:21], vcc")
    for i in range(8):
        k("v_lshlrev_b32 v%d, 16, v%d" % (16 + 2 * i, 4 + i))
        k("v_and_b32 v%d, 0xffff0000, v%d" % (17 + 2 * i, 4 + i))
    k("s_mov_b64 exec, s[20:21]")
    k("v_add_f32 v32, v16, v17")
    for i in range(2, 16):
        k("v_add_f32 v32, v32, v%d" % (16 + i))
    wave_sum(k, 32, 33, 22)
    k("v_mov_b32 v34, 0x3ae38e39")
    k("v_mul_f32 v34, s22, v34")
    k("v_mov_b32 v32, 0")
    k("s_and_saveexec_b64 s[20:21], vcc")
    for i in range(16):
        k("v_sub_f32 v33, v%d, v34" % (16 + i))
        k("v_fmac_f32 v32, v33, v33")
    k("s_mov_b64 exec, s[20:21]")
    wave_sum(k, 32, 33, 23)
    k("v_mov_b32 v35, 0x3ae38e39")
    k("v_mul_f32 v35, s23, v35")
    rne_bf16(k, 35, 35, 36)
    k("v_add_f32 v35, 0x3727c5ac, v35")
    rne_bf16(k, 35, 35, 36)
    k("v_sqrt_f32 v35, v35")
    k("s_nop 0")
    rne_bf16(k, 35, 35, 36)
    rne_bf16(k, 34, 34, 36)
    k("v_rcp_f32 v37, v35")
    k("s_nop 0")
    for i in range(16):
        r = 16 + i
        k("v_sub_f32 v%d, v%d, v34" % (r, r))
        rne_bf16(k, r, r, 36)
        k("v_mul_f32 v33, v%d, v37" % r)
        k("v_fma_f32 v36, -v33, v35, v%d" % r)
        k("v_fma_f32 v%d, v36, v37, v33" % r)
    for i in range(8):
        k("v_cvt_pk_bf16_f32 v%d, v%d, v%d" % (4 + i, 16 + 2 * i, 17 + 2 * i))
    k("""
    s_and_saveexec_b64 s[20:21], vcc
    buffer_store_dwordx4 v[4:7], v2, s[12:15], s16 offen
    buffer_store_dwordx4 v[8:11], v2, s[12:15], s16 offen offset:16
    """)
    k.label(lend)
    return k, 40


def gen_attn():
    k = K("attn_kernel")
    lend = k.newlabel("end")
    k("s_cmp_ge_u32 s2, 256")
    k("s_cbranch_scc1 %s" % lend)
    k.load_ptr(P_WS, 6)
    k("s_waitcnt lgkmcnt(0)")
    k.srd(8, 6, S * 3 * D * 2, WS_QKV)
    k.srd(12, 6, S * D * 2, WS_O)
    k("""
    s_lshl_b32 s16, s2, 8
    v_add_u32 v1, s16, v0
    v_lshrrev_b32 v2, 5, v1
    v_and_b32 v3, 31, v1
    v_mul_u32_u24 v4, 36, v3
    s_movk_i32 s17, 3456
    v_mul_lo_u32 v5, v2, s17
    v_add_u32 v5, v5, v4
    buffer_load_dwordx4 v[8:11], v5, s[8:11], 0 offen
    buffer_load_dwordx4 v[12:15], v5, s[8:11], 0 offen offset:16
    buffer_load_dword v16, v5, s[8:11], 0 offen offset:32
    """)
    def ld9(base, addr, off):
        k("buffer_load_dwordx4 v[%d:%d], v%d, s[8:11], 0 offen offset:%d" % (base, base + 3, addr, off))
        k("buffer_load_dwordx4 v[%d:%d], v%d, s[8:11], 0 offen offset:%d" % (base + 4, base + 7, addr, off + 16))
        k("buffer_load_dword v%d, v%d, s[8:11], 0 offen offset:%d" % (base + 8, addr, off + 32))
    for w in range(8):
        k("v_subrev_u32 v6, %d, v2" % (2 * w))
        k("v_max_i32 v6, 0, v6")
        k("v_mul_lo_u32 v%d, v6, s17" % (190 + w))
        k("v_add_u32 v%d, v%d, v4" % (190 + w, 190 + w))
        ld9(20 + 10 * w, 190 + w, 1152)
    for w in range(8):
        ld9(100 + 10 * w, 190 + w, 2304)
    k("s_waitcnt vmcnt(24)")
    for i in range(9):
        k("v_lshlrev_b32 v%d, 16, v%d" % (200 + 2 * i, 8 + i))
        k("v_and_b32 v%d, 0xffff0000, v%d" % (201 + 2 * i, 8 + i))
    k("s_waitcnt vmcnt(0)")
    for w in range(8):
        lg = 220 + w
        for i in range(9):
            kr = 20 + 10 * w + i
            k("v_lshlrev_b32 v6, 16, v%d" % kr)
            k("v_and_b32 v7, 0xffff0000, v%d" % kr)
            if i == 0:
                k("v_mul_f32 v%d, v%d, v6" % (lg, 200))
            else:
                k("v_fmac_f32 v%d, v%d, v6" % (lg, 200 + 2 * i))
            k("v_fmac_f32 v%d, v%d, v7" % (lg, 201 + 2 * i))
        rne_bf16(k, lg, lg, 6)
        k("v_mul_f32 v%d, 0x3e715bef, v%d" % (lg, lg))
        rne_bf16(k, lg, lg, 6)
        if w > 0:
            k("v_cmp_gt_u32 vcc, %d, v2" % (2 * w))
            k("v_mov_b32 v6, 0xce6e0000")
            k("v_cndmask_b32 v%d, v%d, v6, vcc" % (lg, lg))
    k("v_max_f32 v6, v220, v221")
    for w in range(2, 8):
        k("v_max_f32 v6, v6, v%d" % (220 + w))
    k("v_mov_b32 v7, 0")
    for w in range(8):
        k("v_sub_f32 v%d, v%d, v6" % (220 + w, 220 + w))
        k("v_mul_f32 v%d, 0x3fb8aa3b, v%d" % (220 + w, 220 + w))
        k("v_exp_f32 v%d, v%d" % (220 + w, 220 + w))
        k("s_nop 0")
        k("v_add_f32 v7, v7, v%d" % (220 + w))
    k("v_rcp_f32 v7, v7")
    k("s_nop 0")
    for w in range(8):
        k("v_mul_f32 v%d, v%d, v7" % (220 + w, 220 + w))
        rne_bf16(k, 220 + w, 220 + w, 6)
    for w in range(8):
        for i in range(9):
            vr = 100 + 10 * w + i
            k("v_lshlrev_b32 v6, 16, v%d" % vr)
            k("v_and_b32 v7, 0xffff0000, v%d" % vr)
            if w == 0:
                k("v_mul_f32 v%d, v220, v6" % (230 + 2 * i))
                k("v_mul_f32 v%d, v220, v7" % (231 + 2 * i))
            else:
                k("v_fmac_f32 v%d, v%d, v6" % (230 + 2 * i, 220 + w))
                k("v_fmac_f32 v%d, v%d, v7" % (231 + 2 * i, 220 + w))
    for i in range(9):
        k("v_cvt_pk_bf16_f32 v%d, v%d, v%d" % (8 + i, 230 + 2 * i, 231 + 2 * i))
    k("""
    s_movk_i32 s17, 1152
    v_mul_lo_u32 v5, v2, s17
    v_add_u32 v5, v5, v4
    buffer_store_dwordx4 v[8:11], v5, s[12:15], 0 offen
    buffer_store_dwordx4 v[12:15], v5, s[12:15], 0 offen offset:16
    buffer_store_dword v16, v5, s[12:15], 0 offen offset:32
    """)
    k.label(lend)
    return k, 248


def gen_final(nsplit):
    k = K("final_kernel")
    lend = k.newlabel("end")
    nwg = S * D // 4 // 256
    k("s_cmp_ge_u32 s2, %d" % nwg)
    k("s_cbranch_scc1 %s" % lend)
    k.load_ptr(P_WS, 6)
    k.load_ptr(IN_X, 4)
    k.load_ptr(IN_B2, 24)
    k.load_ptr(P_OUT, 26)
    k("s_waitcnt lgkmcnt(0)")
    k.srd(8, 6, nsplit * S * D * 4, WS_PART)
    k.srd(12, 6, S * D * 2, WS_S)
    k.srd(16, 4, S * D * 2)
    k.srd(28, 24, D * 2)
    k.srd(32, 26, S * D * 2)
    k("""
    s_lshl_b32 s36, s2, 8
    v_add_u32 v1, s36, v0
    v_lshlrev_b32 v2, 4, v1
    v_lshlrev_b32 v3, 3, v1
    """)
    for sp in range(nsplit):
        k("s_mov_b32 s37, %d" % (sp * S * D * 4))
        k("buffer_load_dwordx4 v[%d:%d], v2, s[8:11], s37 offen" % (8 + 4 * sp, 11 + 4 * sp))
    k("buffer_load_dwordx2 v[4:5], v3, s[12:15], 0 offen")
    k("buffer_load_dwordx2 v[6:7], v3, s[16:19], 0 offen")
    k("""
    v_cvt_f32_u32 v40, v1
    v_mul_f32 v40, 0x3be38e39, v40
    v_cvt_u32_f32 v40, v40
    v_mul_u32_u24 v41, 144, v40
    v_sub_u32 v41, v1, v41
    v_cmp_gt_i32 vcc, 0, v41
    v_add_u32 v42, 144, v41
    v_cndmask_b32 v41, v41, v42, vcc
    v_cmp_le_i32 vcc, 144, v41
    v_subrev_u32 v42, 144, v41
    v_cndmask_b32 v41, v41, v42, vcc
    v_lshlrev_b32 v41, 3, v41
    buffer_load_dwordx2 v[44:45], v41, s[28:31], 0 offen
    s_waitcnt vmcnt(0)
    """)
    for e in range(4):
        acc = 8 + e
        for sp in range(1, nsplit):
            k("v_add_f32 v%d, v%d, v%d" % (acc, acc, 8 + 4 * sp + e))
        rne_bf16(k, acc, acc, 46)
        src = 44 + e // 2
        if e % 2 == 0:
            k("v_lshlrev_b32 v47, 16, v%d" % src)
        else:
            k("v_and_b32 v47, 0xffff0000, v%d" % src)
        k("v_add_f32 v%d, v%d, v47" % (acc, acc))
        rne_bf16(k, acc, acc, 46)
        k("v_mul_f32 v47, 0xbfb8aa3b, v%d" % acc)
        k("v_exp_f32 v47, v47")
        k("s_nop 0")
        k("v_add_f32 v47, 1.0, v47")
        k("v_rcp_f32 v47, v47")
        k("s_nop 0")
        k("v_mul_f32 v%d, v%d, v47" % (acc, acc))
        rne_bf16(k, acc, acc, 46)
        src = 4 + e // 2
        if e % 2 == 0:
            k("v_lshlrev_b32 v47, 16, v%d" % src)
        else:
            k("v_and_b32 v47, 0xffff0000, v%d" % src)
        k("v_mul_f32 v%d, v%d, v47" % (acc, acc))
        rne_bf16(k, acc, acc, 46)
        src = 6 + e // 2
        if e % 2 == 0:
            k("v_lshlrev_b32 v47, 16, v%d" % src)
        else:
            k("v_and_b32 v47, 0xffff0000, v%d" % src)
        k("v_add_f32 v%d, v%d, v47" % (acc, acc))
    k("v_cvt_pk_bf16_f32 v4, v8, v9")
    k("v_cvt_pk_bf16_f32 v5, v10, v11")
    k("buffer_store_dwordx2 v[4:5], v3, s[32:35], 0 offen")
    k.label(lend)
    return k, 64


BM, BN, BK = 128, 192, 64
A_BYTES = BM * BK * 2
W_BYTES = BK * BN * 2
STAGE = A_BYTES + W_BYTES


def gen_gemm(name, mode, nsplit=5):
    k = K(name)
    lend = k.newlabel("end")
    if mode == 'g1':
        ntn, nwg = 33, 16 * 33
    elif mode == 'g3':
        ntn, nwg = 3, 16 * 3 * nsplit
    else:
        ntn, nwg = 3, 16 * 3
    k("s_cmp_ge_u32 s2, %d" % nwg)
    k("s_cbranch_scc1 %s" % lend)
    k.load_ptr(P_WS, 40)
    if mode == 'g1':
        k.load_ptr(IN_WQKV, 42)
        k.load_ptr(IN_W1, 44)
        k.load_ptr(IN_B1, 46)
    elif mode == 'g3':
        k.load_ptr(IN_W2, 42)
    else:
        k.load_ptr(IN_WO, 42)
    per = 16 * ntn
    if mode == 'g3':
        k("s_mul_hi_u32 s31, s2, 0x%x" % ((1 << 32) // per + 1))
        k("s_mul_i32 s30, s31, %d" % per)
        k("s_sub_u32 s30, s2, s30")
    else:
        k("s_mov_b32 s31, 0")
        k("s_mov_b32 s30, s2")
    k("s_mul_hi_u32 s20, s30, 0x%x" % ((1 << 32) // ntn + 1))
    k("s_mul_i32 s21, s20, %d" % ntn)
    k("s_sub_u32 s21, s30, s21")
    k("s_lshl_b32 s20, s20, 7")
    k("s_mul_i32 s21, s21, %d" % BN)
    k("s_waitcnt lgkmcnt(0)")
    if mode == 'g1':
        k.srd(4, 40, S * D * 2, WS_XN)
        lda2 = D * 2
        lq = k.newlabel("isq"); lj = k.newlabel("join")
        k("s_cmp_lt_u32 s21, 1728")
        k("s_cbranch_scc1 %s" % lq)
        k.srd(8, 44, D * F * 2)
        k("s_mov_b32 s22, %d" % (F * 2))
        k("s_sub_u32 s28, s21, 1728")
        k.srd(12, 40, S * F * 2, WS_H)
        k("s_mov_b32 s48, %d" % (F * 2))
        k("s_branch %s" % lj)
        k.label(lq)
        k.srd(8, 42, D * 3 * D * 2)
        k("s_mov_b32 s22, %d" % (3 * D * 2))
        k("s_mov_b32 s28, s21")
        k.srd(12, 40, S * 3 * D * 2, WS_QKV)
        k("s_mov_b32 s48, %d" % (3 * D * 2))
        k.label(lj)
        k.srd(16, 46, F * 2)
        k("s_mov_b32 s23, 9")
        k("s_mov_b32 s24, 0")
        k("s_mov_b32 s25, 0")
    elif mode == 'g3':
        k.srd(4, 40, S * F * 2, WS_H)
        lda2 = F * 2
        k.srd(8, 42, F * D * 2)
        k("s_mov_b32 s22, %d" % (D * 2))
        k("s_mov_b32 s28, s21")
        k.srd(12, 40, nsplit * S * D * 4, WS_PART)
        k("s_mov_b32 s48, %d" % (D * 4))
        base, rem = 72 // nsplit, 72 % nsplit
        k("s_cmp_lt_u32 s31, %d" % rem)
        k("s_cselect_b32 s23, %d, %d" % (base + 1, base))
        k("s_min_u32 s29, s31, %d" % rem)
        k("s_mul_i32 s24, s31, %d" % base)
        k("s_add_u32 s24, s24, s29")
        k("s_mul_i32 s25, s24, %d" % (BK * D * 2))
        k("s_lshl_b32 s24, s24, 7")
    else:
        k.srd(4, 40, S * D * 2, WS_O)
        lda2 = D * 2
        k.srd(8, 42, D * D * 2)
        k("s_mov_b32 s22, %d" % (D * 2))
        k("s_mov_b32 s28, s21")
        k.srd(12, 40, S * D * 2, WS_S)
        k("s_mov_b32 s48, %d" % (D * 2))
        k("s_mov_b32 s23, 9")
        k("s_mov_b32 s24, 0")
        k("s_mov_b32 s25, 0")
    k("s_mul_i32 s27, s22, %d" % BK)
    k("""
    v_lshrrev_b32 v1, 6, v0
    s_nop 0
    v_readfirstlane_b32 s26, v1
    v_and_b32 v1, 63, v0
    """)
    k("s_lshl_b32 s32, s26, 5")
    k("s_add_u32 s32, s32, s20")
    k("v_lshrrev_b32 v14, 3, v1")
    k("v_add_u32 v14, s32, v14")
    k("s_movk_i32 s33, %d" % lda2)
    k("v_mul_lo_u32 v14, v14, s33")
    k("v_and_b32 v15, 7, v1")
    k("v_lshlrev_b32 v15, 4, v15")
    k("v_add_u32 v2, v14, v15")
    for i in range(1, 4):
        k("v_add_u32 v%d, %d, v%d" % (2 + i, 8 * lda2, 1 + i))
    k("s_mul_i32 s32, s26, 6144")
    k("v_lshlrev_b32 v14, 4, v1")
    k("v_add_u32 v14, s32, v14")
    k("s_lshl_b32 s33, s28, 1")
    k("s_mov_b32 s34, 43691")
    for j in range(6):
        if j:
            k("v_add_u32 v14, 1024, v14")
        k("v_lshrrev_b32 v15, 7, v14")
        k("v_mul_lo_u32 v15, v15, s34")
        k("v_lshrrev_b32 v15, 17, v15")
        k("v_mul_u32_u24 v12, 384, v15")
        k("v_sub_u32 v12, v14, v12")
        k("v_mul_lo_u32 v15, v15, s22")
        k("v_add3_u32 v%d, v15, v12, s33" % (6 + j))
    k("s_lshr_b32 s32, s26, 1")
    k("s_and_b32 s33, s26, 1")
    k("s_lshl_b32 s34, s32, 13")
    k("v_and_b32 v12, 31, v1")
    k("v_lshlrev_b32 v12, 7, v12")
    k("v_lshrrev_b32 v14, 5, v1")
    k("v_lshlrev_b32 v14, 4, v14")
    k("v_add3_u32 v12, v12, v14, s34")
    k("v_lshrrev_b32 v14, 5, v1")
    k("v_lshlrev_b32 v14, 3, v14")
    k("v_bfe_u32 v15, v1, 2, 2")
    k("v_add_u32 v14, v14, v15")
    k("v_mul_u32_u24 v13, 384, v14")
    k("v_bfe_u32 v14, v1, 4, 1")
    k("v_lshlrev_b32 v14, 5, v14")
    k("v_and_b32 v15, 3, v1")
    k("v_lshlrev_b32 v15, 3, v15")
    k("v_add3_u32 v13, v13, v14, v15")
    k("s_mul_i32 s34, s33, 192")
    k("s_add_u32 s34, s34, %d" % A_BYTES)
    k("v_add_u32 v13, s34, v13")
    for i in range(96):
        k("v_accvgpr_write_b32 a%d, 0" % i)
    k("s_mov_b32 s35, 0")
    k("s_lshl_b32 s36, s26, 12")
    k("s_mul_i32 s37, s26, 6144")
    k("s_add_u32 s37, s37, %d" % A_BYTES)

    def issue_dma(stage_sgpr):
        for i in range(4):
            k("s_add_u32 s38, s36, %s" % stage_sgpr)
            k("s_add_u32 m0, s38, %d" % (i * 1024))
            k("s_nop 0")
            k("buffer_load_dwordx4 v%d, s[4:7], s24 offen lds" % (2 + i))
        for j in range(6):
            k("s_add_u32 s38, s37, %s" % stage_sgpr)
            k("s_add_u32 m0, s38, %d" % (j * 1024))
            k("s_nop 0")
            k("buffer_load_dwordx4 v%d, s[8:11], s25 offen lds" % (6 + j))
        k("s_add_u32 s24, s24, 128")
        k("s_add_u32 s25, s25, s27")

    issue_dma("s35")
    k("s_waitcnt vmcnt(0)")
    k("s_barrier")
    lloop = k.newlabel("loop")
    lnodma = k.newlabel("nodma")
    k.label(lloop)
    k("s_xor_b32 s39, s35, %d" % STAGE)
    k("s_cmp_le_u32 s23, 1")
    k("s_cbranch_scc1 %s" % lnodma)
    issue_dma("s39")
    k.label(lnodma)
    k("v_add_u32 v14, s35, v12")
    k("v_add_u32 v15, s35, v13")

    def reads(ks, base):
        for rb in range(2):
            k("ds_read_b128 v[%d:%d], v14 offset:%d" % (base + 4 * rb, base + 4 * rb + 3, rb * 4096 + ks * 32))
        for cb in range(3):
            for h in range(2):
                r = base + 8 + 4 * cb + 2 * h
                k("ds_read_b64_tr_b16 v[%d:%d], v15 offset:%d" % (r, r + 1, ks * 6144 + h * 1536 + cb * 64))

    def mfmas(base):
        for cb in range(3):
            for rb in range(2):
                a = 16 * (cb * 2 + rb)
                k("v_mfma_f32_32x32x16_bf16 a[%d:%d], v[%d:%d], v[%d:%d], a[%d:%d]" % (
                    a, a + 15, base + 8 + 4 * cb, base + 11 + 4 * cb, base + 4 * rb, base + 4 * rb + 3, a, a + 15))

    sets = [16, 36]
    reads(0, sets[0])
    for ks in range(4):
        if ks < 3:
            reads(ks + 1, sets[(ks + 1) & 1])
            k("s_waitcnt lgkmcnt(8)")
        else:
            k("s_waitcnt lgkmcnt(0)")
        mfmas(sets[ks & 1])
    k("s_waitcnt vmcnt(0)")
    k("s_barrier")
    k("s_mov_b32 s35, s39")
    k("s_sub_u32 s23, s23, 1")
    k("s_cmp_lg_u32 s23, 0")
    k("s_cbranch_scc1 %s" % lloop)
    k("s_nop 15")
    k("s_nop 3")
    esz = 4 if mode == 'g3' else 2
    k("s_lshl_b32 s34, s32, 6")
    k("s_add_u32 s34, s34, s20")
    k("v_and_b32 v14, 31, v1")
    k("v_add_u32 v14, s34, v14")
    k("v_mul_lo_u32 v14, v14, s48")
    k("s_mul_i32 s34, s33, 96")
    k("s_add_u32 s34, s34, s28")
    k("v_lshrrev_b32 v15, 5, v1")
    k("v_lshlrev_b32 v15, 2, v15")
    k("v_add_u32 v15, s34, v15")
    if mode == 'g3':
        k("s_mul_i32 s34, s31, %d" % (S * D * 4))
        k("v_lshl_add_u32 v14, v15, 2, v14")
        k("v_add_u32 v14, s34, v14")
    else:
        k("v_lshl_add_u32 v14, v15, 1, v14")
    rowstep = 32
    if mode == 'g1':
        lplain = k.newlabel("plain")
        k("s_cmp_lt_u32 s21, 1728")
        k("s_cbranch_scc1 %s" % lplain)
        k("v_lshlrev_b32 v15, 1, v15")
        k("s_mul_i32 s34, s48, 32")
        for cb in range(3):
            for g in range(4):
                k("buffer_load_dwordx2 v[%d:%d], v15, s[16:19], 0 offen offset:%d" % (56 + 2 * g, 57 + 2 * g, cb * 64 + g * 16))
            k("s_waitcnt vmcnt(0)")
            for rb in range(2):
                for g in range(4):
                    a = 16 * (cb * 2 + rb) + 4 * g
                    for e in range(4):
                        k("v_accvgpr_read_b32 v%d, a%d" % (40 + e, a + e))
                    for e in range(4):
                        k("v_lshlrev_b32 v44, 16, v%d" % (56 + 2 * g + e // 2) if e % 2 == 0 else "v_and_b32 v44, 0xffff0000, v%d" % (56 + 2 * g + e // 2))
                        rne_bf16(k, 40 + e, 40 + e, 45)
                        k("v_add_f32 v%d, v%d, v44" % (40 + e, 40 + e))
                        rne_bf16(k, 40 + e, 40 + e, 45)
                        x = 40 + e
                        k("v_mul_f32 v44, v%d, v%d" % (x, x))
                        k("v_mov_b32 v45, 0xc0135761")
                        k("v_fmac_f32 v45, 0xbdd2d3e8, v44")
                        k("v_mul_f32 v45, v45, v%d" % x)
                        k("v_exp_f32 v45, v45")
                        k("s_nop 0")
                        k("v_add_f32 v45, 1.0, v45")
                        k("v_rcp_f32 v45, v45")
                        k("s_nop 0")
                        k("v_mul_f32 v%d, v%d, v45" % (x, x))
                    k("v_cvt_pk_bf16_f32 v46, v40, v41")
                    k("v_cvt_pk_bf16_f32 v47, v42, v43")
                    if rb == 0:
                        k("buffer_store_dwordx2 v[46:47], v14, s[12:15], 0 offen offset:%d" % (cb * 64 + g * 16))
                    else:
                        k("buffer_store_dwordx2 v[46:47], v14, s[12:15], s34 offen offset:%d" % (cb * 64 + g * 16))
        k("s_branch %s" % lend)
        k.label(lplain)
    k("s_mul_i32 s34, s48, 32")
    for cb in range(3):
        for rb in range(2):
            for g in range(4):
                a = 16 * (cb * 2 + rb) + 4 * g
                for e in range(4):
                    k("v_accvgpr_read_b32 v%d, a%d" % (40 + e, a + e))
                so = "0" if rb == 0 else "s34"
                if mode == 'g3':
                    k("buffer_store_dwordx4 v[40:43], v14, s[12:15], %s offen offset:%d" % (so, cb * 128 + g * 32))
                    k("s_nop 1")
                else:
                    k("v_cvt_pk_bf16_f32 v46, v40, v41")
                    k("v_cvt_pk_bf16_f32 v47, v42, v43")
                    k("buffer_store_dwordx2 v[46:47], v14, s[12:15], %s offen offset:%d" % (so, cb * 64 + g * 16))
    k.label(lend)
    return k, 64 + 96, 64, nwg


def main():
    nsplit = 5
    kerns = []
    launches = []
    k, v = gen_ln(); kerns.append(k.text(v)); launches.append((k.name, 512, 0))
    k, v, acc, nwg = gen_gemm("g1_kernel", 'g1'); kerns.append(k.text(v, accum=acc)); launches.append((k.name, nwg, 2 * STAGE))
    k, v = gen_attn(); kerns.append(k.text(v)); launches.append((k.name, 256, 0))
    k, v, acc, nwg = gen_gemm("g2_kernel", 'g2'); kerns.append(k.text(v, accum=acc)); launches.append((k.name, nwg, 2 * STAGE))
    k, v, acc, nwg = gen_gemm("g3_kernel", 'g3', nsplit); kerns.append(k.text(v, accum=acc)); launches.append((k.name, nwg, 2 * STAGE))
    k, v = gen_final(nsplit); kerns.append(k.text(v)); launches.append((k.name, S * D // 4 // 256, 0))
    out = []
    for (n, g, lds) in launches:
        out.append("; @launch kernel=%s grid=(%d,1,1) block=(256,1,1) lds=%d" % (n, g, lds))
    out.append('.amdgcn_target "amdgcn-amd-amdhsa--gfx950"')
    out.append(".text")
    for t, d in kerns:
        out.append(t)
    out.append('.section .rodata,"a"')
    for t, d in kerns:
        out.append(".p2align 6")
        out.append(d)
    open("cdna_kernels/%s.s" % NAME, "w").write("\n".join(out) + "\n")


main()
```

```python
import sys, math

NAME = "recurrent_scan__sliding_local_dilated__dense_activation_gelu__prompt"
S, D, F, H, DH = 2048, 576, 4608, 32, 18
WS_XN = 0x0
WS_QKV = 0x400000
WS_H = 0x1000000
WS_O = 0x2400000
WS_S = 0x2800000
WS_PART = 0x3000000
IN_X, IN_WQKV, IN_WO, IN_BX, IN_W1, IN_B1, IN_W2, IN_B2, P_OUT, P_DBG, P_WS = range(11)


class K:
    def __init__(self, name):
        self.name = name
        self.lines = []
        self.nlabel = 0

    def __call__(self, s):
        for ln in s.strip().split("\n"):
            ln = ln.strip()
            if ln:
                self.lines.append("    " + ln)

    def label(self, l):
        self.lines.append(l + ":")

    def newlabel(self, base="L"):
        self.nlabel += 1
        return "%s_%s_%d" % (base, self.name, self.nlabel)

    def load_ptr(self, slot, sd):
        self("s_load_dwordx2 s[%d:%d], s[0:1], %d" % (sd, sd + 1, slot * 8))

    def srd(self, sd, sbase, nbytes, off=0):
        if off:
            self("s_add_u32 s%d, s%d, 0x%x" % (sd, sbase, off))
            self("s_addc_u32 s%d, s%d, 0" % (sd + 1, sbase + 1))
        else:
            self("s_mov_b32 s%d, s%d" % (sd, sbase))
            self("s_mov_b32 s%d, s%d" % (sd + 1, sbase + 1))
        self("s_mov_b32 s%d, 0x%x" % (sd + 2, nbytes))
        self("s_mov_b32 s%d, 0x00020000" % (sd + 3))

    def text(self, vgpr, sgpr=96, accum=None):
        accum = accum if accum is not None else ((vgpr + 3) // 4) * 4
        out = [".globl %s" % self.name, ".p2align 8", ".type %s,@function" % self.name, "%s:" % self.name]
        out += self.lines
        out += ["    s_endpgm"]
        desc = [".amdhsa_kernel %s" % self.name,
                "  .amdhsa_next_free_vgpr %d" % vgpr,
                "  .amdhsa_next_free_sgpr %d" % sgpr,
                "  .amdhsa_accum_offset %d" % accum,
                "  .amdhsa_group_segment_fixed_size 0",
                "  .amdhsa_kernarg_size 88",
                "  .amdhsa_user_sgpr_count 2",
                "  .amdhsa_user_sgpr_kernarg_segment_ptr 1",
                "  .amdhsa_system_sgpr_workgroup_id_x 1",
                ".end_amdhsa_kernel"]
        return "\n".join(out), "\n".join(desc)


def rne_bf16(k, dst, src, tmp):
    k("v_cvt_pk_bf16_f32 v%d, v%d, v%d" % (tmp, src, src))
    k("v_lshlrev_b32 v%d, 16, v%d" % (dst, tmp))


def wave_sum(k, v, tmp, sdst):
    for off in (0x041F, 0x081F, 0x101F, 0x201F, 0x401F):
        k("ds_swizzle_b32 v%d, v%d offset:0x%x" % (tmp, v, off))
        k("s_waitcnt lgkmcnt(0)")
        k("v_add_f32 v%d, v%d, v%d" % (v, v, tmp))
    k("s_nop 0")
    k("v_readlane_b32 s%d, v%d, 32" % (sdst, v))
    k("s_nop 1")
    k("v_add_f32 v%d, s%d, v%d" % (tmp, sdst, v))
    k("s_nop 0")
    k("v_readlane_b32 s%d, v%d, 0" % (sdst, tmp))
    k("s_nop 1")


def gen_ln():
    k = K("ln_kernel")
    k("s_cmp_ge_u32 s2, 512")
    lend = k.newlabel("end")
    k("s_cbranch_scc1 %s" % lend)
    k.load_ptr(IN_X, 4)
    k.load_ptr(P_WS, 6)
    k("s_waitcnt lgkmcnt(0)")
    k.srd(8, 4, S * D * 2)
    k.srd(12, 6, S * D * 2, WS_XN)
    k("""
    v_lshrrev_b32 v1, 6, v0
    s_nop 0
    v_readfirstlane_b32 s16, v1
    s_lshl_b32 s17, s2, 2
    s_add_u32 s16, s16, s17
    s_mul_i32 s16, s16, 1152
    v_and_b32 v1, 63, v0
    v_lshlrev_b32 v2, 5, v1
    v_cmp_gt_u32 vcc, 36, v1
    s_and_saveexec_b64 s[20:21], vcc
    buffer_load_dwordx4 v[4:7], v2, s[8:11], s16 offen
    buffer_load_dwordx4 v[8:11], v2, s[8:11], s16 offen offset:16
    s_mov_b64 exec, s[20:21]
    """)
    for i in range(16):
        k("v_mov_b32 v%d, 0" % (16 + i))
    k("s_waitcnt vmcnt(0)")
    k("s_and_saveexec_b64 s[20:21], vcc")
    for i in range(8):
        k("v_lshlrev_b32 v%d, 16, v%d" % (16 + 2 * i, 4 + i))
        k("v_and_b32 v%d, 0xffff0000, v%d" % (17 + 2 * i, 4 + i))
    k("s_mov_b64 exec, s[20:21]")
    k("v_add_f32 v32, v16, v17")
    for i in range(2, 16):
        k("v_add_f32 v32, v32, v%d" % (16 + i))
    wave_sum(k, 32, 33, 22)
    k("v_mov_b32 v34, 0x3ae38e39")
    k("v_mul_f32 v34, s22, v34")
    k("v_mov_b32 v32, 0")
    k("s_and_saveexec_b64 s[20:21], vcc")
    for i in range(16):
        k("v_sub_f32 v33, v%d, v34" % (16 + i))
        k("v_fmac_f32 v32, v33, v33")
    k("s_mov_b64 exec, s[20:21]")
    wave_sum(k, 32, 33, 23)
    k("v_mov_b32 v35, 0x3ae38e39")
    k("v_mul_f32 v35, s23, v35")
    rne_bf16(k, 35, 35, 36)
    k("v_add_f32 v35, 0x3727c5ac, v35")
    rne_bf16(k, 35, 35, 36)
    k("v_sqrt_f32 v35, v35")
    k("s_nop 0")
    rne_bf16(k, 35, 35, 36)
    rne_bf16(k, 34, 34, 36)
    k("v_rcp_f32 v37, v35")
    k("s_nop 0")
    for i in range(16):
        r = 16 + i
        k("v_sub_f32 v%d, v%d, v34" % (r, r))
        rne_bf16(k, r, r, 36)
        k("v_mul_f32 v33, v%d, v37" % r)
        k("v_fma_f32 v36, -v33, v35, v%d" % r)
        k("v_fma_f32 v%d, v36, v37, v33" % r)
    for i in range(8):
        k("v_cvt_pk_bf16_f32 v%d, v%d, v%d" % (4 + i, 16 + 2 * i, 17 + 2 * i))
    k("""
    v_lshrrev_b32 v3, 6, v0
    s_lshl_b32 s17, s2, 2
    v_add_u32 v3, s17, v3
    v_and_b32 v33, 31, v3
    v_lshrrev_b32 v3, 5, v3
    s_mov_b32 s17, 36864
    v_mul_lo_u32 v3, v3, s17
    v_lshl_add_u32 v3, v33, 4, v3
    v_lshl_add_u32 v3, v1, 10, v3
    s_and_saveexec_b64 s[20:21], vcc
    buffer_store_dwordx4 v[4:7], v3, s[12:15], 0 offen
    buffer_store_dwordx4 v[8:11], v3, s[12:15], 0 offen offset:512
    """)
    k.label(lend)
    return k, 40


def gen_attn():
    k = K("attn_kernel")
    lend = k.newlabel("end")
    k("s_cmp_ge_u32 s2, 256")
    k("s_cbranch_scc1 %s" % lend)
    k.load_ptr(P_WS, 6)
    k("s_waitcnt lgkmcnt(0)")
    k.srd(8, 6, S * 3 * D * 2, WS_QKV)
    k.srd(12, 6, S * D * 2, WS_O)
    k("""
    s_lshl_b32 s16, s2, 8
    v_add_u32 v1, s16, v0
    v_lshrrev_b32 v2, 5, v1
    v_and_b32 v3, 31, v1
    v_mul_u32_u24 v4, 36, v3
    s_movk_i32 s17, 3456
    v_mul_lo_u32 v5, v2, s17
    v_add_u32 v5, v5, v4
    buffer_load_dwordx4 v[8:11], v5, s[8:11], 0 offen
    buffer_load_dwordx4 v[12:15], v5, s[8:11], 0 offen offset:16
    buffer_load_dword v16, v5, s[8:11], 0 offen offset:32
    """)
    def ld9(base, addr, off):
        k("buffer_load_dwordx4 v[%d:%d], v%d, s[8:11], 0 offen offset:%d" % (base, base + 3, addr, off))
        k("buffer_load_dwordx4 v[%d:%d], v%d, s[8:11], 0 offen offset:%d" % (base + 4, base + 7, addr, off + 16))
        k("buffer_load_dword v%d, v%d, s[8:11], 0 offen offset:%d" % (base + 8, addr, off + 32))
    for w in range(8):
        k("v_subrev_u32 v6, %d, v2" % (2 * w))
        k("v_max_i32 v6, 0, v6")
        k("v_mul_lo_u32 v%d, v6, s17" % (190 + w))
        k("v_add_u32 v%d, v%d, v4" % (190 + w, 190 + w))
        ld9(20 + 10 * w, 190 + w, 1152)
    for w in range(8):
        ld9(100 + 10 * w, 190 + w, 2304)
    k("s_waitcnt vmcnt(24)")
    for i in range(9):
        k("v_lshlrev_b32 v%d, 16, v%d" % (200 + 2 * i, 8 + i))
        k("v_and_b32 v%d, 0xffff0000, v%d" % (201 + 2 * i, 8 + i))
    k("s_waitcnt vmcnt(0)")
    for w in range(8):
        lg = 220 + w
        for i in range(9):
            kr = 20 + 10 * w + i
            k("v_lshlrev_b32 v6, 16, v%d" % kr)
            k("v_and_b32 v7, 0xffff0000, v%d" % kr)
            if i == 0:
                k("v_mul_f32 v%d, v%d, v6" % (lg, 200))
            else:
                k("v_fmac_f32 v%d, v%d, v6" % (lg, 200 + 2 * i))
            k("v_fmac_f32 v%d, v%d, v7" % (lg, 201 + 2 * i))
        rne_bf16(k, lg, lg, 6)
        k("v_mul_f32 v%d, 0x3e715bef, v%d" % (lg, lg))
        rne_bf16(k, lg, lg, 6)
        if w > 0:
            k("v_cmp_gt_u32 vcc, %d, v2" % (2 * w))
            k("v_mov_b32 v6, 0xce6e0000")
            k("v_cndmask_b32 v%d, v%d, v6, vcc" % (lg, lg))
    k("v_max_f32 v6, v220, v221")
    for w in range(2, 8):
        k("v_max_f32 v6, v6, v%d" % (220 + w))
    k("v_mov_b32 v7, 0")
    for w in range(8):
        k("v_sub_f32 v%d, v%d, v6" % (220 + w, 220 + w))
        k("v_mul_f32 v%d, 0x3fb8aa3b, v%d" % (220 + w, 220 + w))
        k("v_exp_f32 v%d, v%d" % (220 + w, 220 + w))
        k("s_nop 0")
        k("v_add_f32 v7, v7, v%d" % (220 + w))
    k("v_rcp_f32 v7, v7")
    k("s_nop 0")
    for w in range(8):
        k("v_mul_f32 v%d, v%d, v7" % (220 + w, 220 + w))
        rne_bf16(k, 220 + w, 220 + w, 6)
    for w in range(8):
        for i in range(9):
            vr = 100 + 10 * w + i
            k("v_lshlrev_b32 v6, 16, v%d" % vr)
            k("v_and_b32 v7, 0xffff0000, v%d" % vr)
            if w == 0:
                k("v_mul_f32 v%d, v220, v6" % (230 + 2 * i))
                k("v_mul_f32 v%d, v220, v7" % (231 + 2 * i))
            else:
                k("v_fmac_f32 v%d, v%d, v6" % (230 + 2 * i, 220 + w))
                k("v_fmac_f32 v%d, v%d, v7" % (231 + 2 * i, 220 + w))
    for i in range(9):
        k("v_cvt_pk_bf16_f32 v%d, v%d, v%d" % (8 + i, 230 + 2 * i, 231 + 2 * i))
    k("""
    s_movk_i32 s17, 1152
    v_mul_lo_u32 v5, v2, s17
    v_add_u32 v5, v5, v4
    buffer_store_dwordx4 v[8:11], v5, s[12:15], 0 offen
    buffer_store_dwordx4 v[12:15], v5, s[12:15], 0 offen offset:16
    buffer_store_dword v16, v5, s[12:15], 0 offen offset:32
    """)
    k.label(lend)
    return k, 248


def gen_final(nsplit):
    k = K("final_kernel")
    lend = k.newlabel("end")
    nwg = S * D // 4 // 256
    k("s_cmp_ge_u32 s2, %d" % nwg)
    k("s_cbranch_scc1 %s" % lend)
    k.load_ptr(P_WS, 6)
    k.load_ptr(IN_X, 4)
    k.load_ptr(IN_B2, 24)
    k.load_ptr(P_OUT, 26)
    k("s_waitcnt lgkmcnt(0)")
    k.srd(8, 6, nsplit * S * D * 4, WS_PART)
    k.srd(12, 6, S * D * 2, WS_S)
    k.srd(16, 4, S * D * 2)
    k.srd(28, 24, D * 2)
    k.srd(32, 26, S * D * 2)
    k("""
    s_lshl_b32 s36, s2, 8
    v_add_u32 v1, s36, v0
    v_lshlrev_b32 v2, 4, v1
    v_lshlrev_b32 v3, 3, v1
    """)
    for sp in range(nsplit):
        k("s_mov_b32 s37, %d" % (sp * S * D * 4))
        k("buffer_load_dwordx4 v[%d:%d], v2, s[8:11], s37 offen" % (8 + 4 * sp, 11 + 4 * sp))
    k("buffer_load_dwordx2 v[4:5], v3, s[12:15], 0 offen")
    k("buffer_load_dwordx2 v[6:7], v3, s[16:19], 0 offen")
    k("""
    v_cvt_f32_u32 v40, v1
    v_mul_f32 v40, 0x3be38e39, v40
    v_cvt_u32_f32 v40, v40
    v_mul_u32_u24 v41, 144, v40
    v_sub_u32 v41, v1, v41
    v_cmp_gt_i32 vcc, 0, v41
    v_add_u32 v42, 144, v41
    v_cndmask_b32 v41, v41, v42, vcc
    v_cmp_le_i32 vcc, 144, v41
    v_subrev_u32 v42, 144, v41
    v_cndmask_b32 v41, v41, v42, vcc
    v_lshlrev_b32 v41, 3, v41
    buffer_load_dwordx2 v[44:45], v41, s[28:31], 0 offen
    s_waitcnt vmcnt(0)
    """)
    for e in range(4):
        acc = 8 + e
        for sp in range(1, nsplit):
            k("v_add_f32 v%d, v%d, v%d" % (acc, acc, 8 + 4 * sp + e))
        rne_bf16(k, acc, acc, 46)
        src = 44 + e // 2
        if e % 2 == 0:
            k("v_lshlrev_b32 v47, 16, v%d" % src)
        else:
            k("v_and_b32 v47, 0xffff0000, v%d" % src)
        k("v_add_f32 v%d, v%d, v47" % (acc, acc))
        rne_bf16(k, acc, acc, 46)
        k("v_mul_f32 v47, 0xbfb8aa3b, v%d" % acc)
        k("v_exp_f32 v47, v47")
        k("s_nop 0")
        k("v_add_f32 v47, 1.0, v47")
        k("v_rcp_f32 v47, v47")
        k("s_nop 0")
        k("v_mul_f32 v%d, v%d, v47" % (acc, acc))
        rne_bf16(k, acc, acc, 46)
        src = 4 + e // 2
        if e % 2 == 0:
            k("v_lshlrev_b32 v47, 16, v%d" % src)
        else:
            k("v_and_b32 v47, 0xffff0000, v%d" % src)
        k("v_mul_f32 v%d, v%d, v47" % (acc, acc))
        rne_bf16(k, acc, acc, 46)
        src = 6 + e // 2
        if e % 2 == 0:
            k("v_lshlrev_b32 v47, 16, v%d" % src)
        else:
            k("v_and_b32 v47, 0xffff0000, v%d" % src)
        k("v_add_f32 v%d, v%d, v47" % (acc, acc))
    k("v_cvt_pk_bf16_f32 v4, v8, v9")
    k("v_cvt_pk_bf16_f32 v5, v10, v11")
    k("buffer_store_dwordx2 v[4:5], v3, s[32:35], 0 offen")
    k.label(lend)
    return k, 64


BM, BN, BK = 128, 192, 64
A_BYTES = BM * BK * 2
W_BYTES = BK * BN * 2
STAGE = A_BYTES + W_BYTES


def gen_gemm(name, mode, nsplit=5):
    k = K(name)
    lend = k.newlabel("end")
    if mode == 'g1':
        ntn, nwg = 33, 16 * 33
    elif mode == 'g3':
        ntn, nwg = 3, 16 * 3 * nsplit
    else:
        ntn, nwg = 3, 16 * 3
    k("s_cmp_ge_u32 s2, %d" % nwg)
    k("s_cbranch_scc1 %s" % lend)
    k.load_ptr(P_WS, 40)
    if mode == 'g1':
        k.load_ptr(IN_WQKV, 42)
        k.load_ptr(IN_W1, 44)
        k.load_ptr(IN_B1, 46)
    elif mode == 'g3':
        k.load_ptr(IN_W2, 42)
    else:
        k.load_ptr(IN_WO, 42)
    k("s_and_b32 s20, s2, 7")
    k("s_lshl_b32 s20, s20, 1")
    k("s_lshr_b32 s30, s2, 3")
    k("s_and_b32 s29, s30, 1")
    k("s_add_u32 s20, s20, s29")
    k("s_lshr_b32 s30, s30, 1")
    k("s_mul_hi_u32 s31, s30, 0x%x" % ((1 << 32) // ntn + 1))
    k("s_mul_i32 s21, s31, %d" % ntn)
    k("s_sub_u32 s21, s30, s21")
    k("s_lshl_b32 s20, s20, 7")
    k("s_mul_i32 s21, s21, %d" % BN)
    k("s_waitcnt lgkmcnt(0)")
    if mode == 'g1':
        k.srd(4, 40, S * D * 2, WS_XN)
        lda2 = D * 2
        lq = k.newlabel("isq"); lj = k.newlabel("join")
        k("s_cmp_lt_u32 s21, 1728")
        k("s_cbranch_scc1 %s" % lq)
        k.srd(8, 44, D * F * 2)
        k("s_mov_b32 s22, %d" % (F * 2))
        k("s_sub_u32 s28, s21, 1728")
        k.srd(12, 40, S * F * 2, WS_H)
        k("s_mov_b32 s48, %d" % (F * 2))
        k("s_branch %s" % lj)
        k.label(lq)
        k.srd(8, 42, D * 3 * D * 2)
        k("s_mov_b32 s22, %d" % (3 * D * 2))
        k("s_mov_b32 s28, s21")
        k.srd(12, 40, S * 3 * D * 2, WS_QKV)
        k("s_mov_b32 s48, %d" % (3 * D * 2))
        k.label(lj)
        k.srd(16, 46, F * 2)
        k("s_mov_b32 s23, 9")
        k("s_mov_b32 s24, 0")
        k("s_mov_b32 s25, 0")
    elif mode == 'g3':
        k.srd(4, 40, S * F * 2, WS_H)
        lda2 = F * 2
        k.srd(8, 42, F * D * 2)
        k("s_mov_b32 s22, %d" % (D * 2))
        k("s_mov_b32 s28, s21")
        k.srd(12, 40, nsplit * S * D * 4, WS_PART)
        k("s_mov_b32 s48, %d" % (D * 4))
        base, rem = 72 // nsplit, 72 % nsplit
        k("s_cmp_lt_u32 s31, %d" % rem)
        k("s_cselect_b32 s23, %d, %d" % (base + 1, base))
        k("s_min_u32 s29, s31, %d" % rem)
        k("s_mul_i32 s24, s31, %d" % base)
        k("s_add_u32 s24, s24, s29")
        k("s_mul_i32 s25, s24, %d" % (BK * D * 2))
        k("s_lshl_b32 s24, s24, 7")
    else:
        k.srd(4, 40, S * D * 2, WS_O)
        lda2 = D * 2
        k.srd(8, 42, D * D * 2)
        k("s_mov_b32 s22, %d" % (D * 2))
        k("s_mov_b32 s28, s21")
        k.srd(12, 40, S * D * 2, WS_S)
        k("s_mov_b32 s48, %d" % (D * 2))
        k("s_mov_b32 s23, 9")
        k("s_mov_b32 s24, 0")
        k("s_mov_b32 s25, 0")
    k("s_mul_i32 s27, s22, %d" % BK)
    k("""
    v_lshrrev_b32 v1, 6, v0
    s_nop 0
    v_readfirstlane_b32 s26, v1
    v_and_b32 v1, 63, v0
    """)
    k("s_lshl_b32 s32, s26, 5")
    k("s_add_u32 s32, s32, s20")
    k("v_lshrrev_b32 v14, 3, v1")
    k("v_add_u32 v14, s32, v14")
    k("s_movk_i32 s33, %d" % lda2)
    k("v_mul_lo_u32 v14, v14, s33")
    k("v_and_b32 v15, 7, v1")
    k("v_lshlrev_b32 v15, 4, v15")
    k("v_add_u32 v2, v14, v15")
    for i in range(1, 4):
        k("v_add_u32 v%d, %d, v%d" % (2 + i, 8 * lda2, 1 + i))
    k("s_mul_i32 s32, s26, 6144")
    k("v_lshlrev_b32 v14, 4, v1")
    k("v_add_u32 v14, s32, v14")
    k("s_lshl_b32 s33, s28, 1")
    k("s_mov_b32 s34, 43691")
    for j in range(6):
        if j:
            k("v_add_u32 v14, 1024, v14")
        k("v_lshrrev_b32 v15, 7, v14")
        k("v_mul_lo_u32 v15, v15, s34")
        k("v_lshrrev_b32 v15, 17, v15")
        k("v_mul_u32_u24 v12, 384, v15")
        k("v_sub_u32 v12, v14, v12")
        k("v_mul_lo_u32 v15, v15, s22")
        k("v_add3_u32 v%d, v15, v12, s33" % (6 + j))
    k("s_lshr_b32 s32, s26, 1")
    k("s_and_b32 s33, s26, 1")
    k("s_lshl_b32 s34, s32, 13")
    k("v_and_b32 v12, 31, v1")
    k("v_lshlrev_b32 v12, 7, v12")
    k("v_lshrrev_b32 v14, 5, v1")
    k("v_lshlrev_b32 v14, 4, v14")
    k("v_add3_u32 v12, v12, v14, s34")
    k("v_lshrrev_b32 v14, 5, v1")
    k("v_lshlrev_b32 v14, 3, v14")
    k("v_bfe_u32 v15, v1, 2, 2")
    k("v_add_u32 v14, v14, v15")
    k("v_mul_u32_u24 v13, 384, v14")
    k("v_bfe_u32 v14, v1, 4, 1")
    k("v_lshlrev_b32 v14, 5, v14")
    k("v_and_b32 v15, 3, v1")
    k("v_lshlrev_b32 v15, 3, v15")
    k("v_add3_u32 v13, v13, v14, v15")
    k("s_mul_i32 s34, s33, 192")
    k("s_add_u32 s34, s34, %d" % A_BYTES)
    k("v_add_u32 v13, s34, v13")
    for i in range(96):
        k("v_accvgpr_write_b32 a%d, 0" % i)
    k("s_mov_b32 s35, 0")
    k("s_lshl_b32 s36, s26, 12")
    k("s_mul_i32 s37, s26, 6144")
    k("s_add_u32 s37, s37, %d" % A_BYTES)

    def issue_dma(stage_sgpr):
        for i in range(4):
            k("s_add_u32 s38, s36, %s" % stage_sgpr)
            k("s_add_u32 m0, s38, %d" % (i * 1024))
            k("s_nop 0")
            k("buffer_load_dwordx4 v%d, s[4:7], s24 offen lds" % (2 + i))
        for j in range(6):
            k("s_add_u32 s38, s37, %s" % stage_sgpr)
            k("s_add_u32 m0, s38, %d" % (j * 1024))
            k("s_nop 0")
            k("buffer_load_dwordx4 v%d, s[8:11], s25 offen lds" % (6 + j))
        k("s_add_u32 s24, s24, 128")
        k("s_add_u32 s25, s25, s27")

    issue_dma("s35")
    k("s_waitcnt vmcnt(0)")
    k("s_barrier")
    lloop = k.newlabel("loop")
    lnodma = k.newlabel("nodma")
    k.label(lloop)
    k("s_xor_b32 s39, s35, %d" % STAGE)
    k("s_cmp_le_u32 s23, 1")
    k("s_cbranch_scc1 %s" % lnodma)
    issue_dma("s39")
    k.label(lnodma)
    k("v_add_u32 v14, s35, v12")
    k("v_add_u32 v15, s35, v13")

    def reads(ks, base):
        for rb in range(2):
            k("ds_read_b128 v[%d:%d], v14 offset:%d" % (base + 4 * rb, base + 4 * rb + 3, rb * 4096 + ks * 32))
        for cb in range(3):
            for h in range(2):
                r = base + 8 + 4 * cb + 2 * h
                k("ds_read_b64_tr_b16 v[%d:%d], v15 offset:%d" % (r, r + 1, ks * 6144 + h * 1536 + cb * 64))

    def mfmas(base):
        for cb in range(3):
            for rb in range(2):
                a = 16 * (cb * 2 + rb)
                k("v_mfma_f32_32x32x16_bf16 a[%d:%d], v[%d:%d], v[%d:%d], a[%d:%d]" % (
                    a, a + 15, base + 8 + 4 * cb, base + 11 + 4 * cb, base + 4 * rb, base + 4 * rb + 3, a, a + 15))

    sets = [16, 36]
    reads(0, sets[0])
    for ks in range(4):
        if ks < 3:
            reads(ks + 1, sets[(ks + 1) & 1])
            k("s_waitcnt lgkmcnt(8)")
        else:
            k("s_waitcnt lgkmcnt(0)")
        mfmas(sets[ks & 1])
    k("s_waitcnt vmcnt(0)")
    k("s_barrier")
    k("s_mov_b32 s35, s39")
    k("s_sub_u32 s23, s23, 1")
    k("s_cmp_lg_u32 s23, 0")
    k("s_cbranch_scc1 %s" % lloop)
    k("s_nop 15")
    k("s_nop 3")
    esz = 4 if mode == 'g3' else 2
    k("s_lshl_b32 s34, s32, 6")
    k("s_add_u32 s34, s34, s20")
    k("v_and_b32 v14, 31, v1")
    k("v_add_u32 v14, s34, v14")
    k("v_mul_lo_u32 v14, v14, s48")
    k("s_mul_i32 s34, s33, 96")
    k("s_add_u32 s34, s34, s28")
    k("v_lshrrev_b32 v15, 5, v1")
    k("v_lshlrev_b32 v15, 2, v15")
    k("v_add_u32 v15, s34, v15")
    if mode == 'g3':
        k("s_mul_i32 s34, s31, %d" % (S * D * 4))
        k("v_lshl_add_u32 v14, v15, 2, v14")
        k("v_add_u32 v14, s34, v14")
    else:
        k("v_lshl_add_u32 v14, v15, 1, v14")
    rowstep = 32
    if mode == 'g1':
        lplain = k.newlabel("plain")
        k("s_cmp_lt_u32 s21, 1728")
        k("s_cbranch_scc1 %s" % lplain)
        k("v_lshlrev_b32 v15, 1, v15")
        k("s_mul_i32 s34, s48, 32")
        for cb in range(3):
            for g in range(4):
                k("buffer_load_dwordx2 v[%d:%d], v15, s[16:19], 0 offen offset:%d" % (56 + 2 * g, 57 + 2 * g, cb * 64 + g * 16))
            k("s_waitcnt vmcnt(0)")
            for rb in range(2):
                for g in range(4):
                    a = 16 * (cb * 2 + rb) + 4 * g
                    for e in range(4):
                        k("v_accvgpr_read_b32 v%d, a%d" % (40 + e, a + e))
                    for e in range(4):
                        k("v_lshlrev_b32 v44, 16, v%d" % (56 + 2 * g + e // 2) if e % 2 == 0 else "v_and_b32 v44, 0xffff0000, v%d" % (56 + 2 * g + e // 2))
                        rne_bf16(k, 40 + e, 40 + e, 45)
                        k("v_add_f32 v%d, v%d, v44" % (40 + e, 40 + e))
                        rne_bf16(k, 40 + e, 40 + e, 45)
                        x = 40 + e
                        k("v_mul_f32 v44, v%d, v%d" % (x, x))
                        k("v_mov_b32 v45, 0xc0135761")
                        k("v_fmac_f32 v45, 0xbdd2d3e8, v44")
                        k("v_mul_f32 v45, v45, v%d" % x)
                        k("v_exp_f32 v45, v45")
                        k("s_nop 0")
                        k("v_add_f32 v45, 1.0, v45")
                        k("v_rcp_f32 v45, v45")
                        k("s_nop 0")
                        k("v_mul_f32 v%d, v%d, v45" % (x, x))
                    k("v_cvt_pk_bf16_f32 v46, v40, v41")
                    k("v_cvt_pk_bf16_f32 v47, v42, v43")
                    if rb == 0:
                        k("buffer_store_dwordx2 v[46:47], v14, s[12:15], 0 offen offset:%d" % (cb * 64 + g * 16))
                    else:
                        k("buffer_store_dwordx2 v[46:47], v14, s[12:15], s34 offen offset:%d" % (cb * 64 + g * 16))
        k("s_branch %s" % lend)
        k.label(lplain)
    k("s_mul_i32 s34, s48, 32")
    for cb in range(3):
        for rb in range(2):
            for g in range(4):
                a = 16 * (cb * 2 + rb) + 4 * g
                for e in range(4):
                    k("v_accvgpr_read_b32 v%d, a%d" % (40 + e, a + e))
                so = "0" if rb == 0 else "s34"
                if mode == 'g3':
                    k("buffer_store_dwordx4 v[40:43], v14, s[12:15], %s offen offset:%d" % (so, cb * 128 + g * 32))
                    k("s_nop 1")
                else:
                    k("v_cvt_pk_bf16_f32 v46, v40, v41")
                    k("v_cvt_pk_bf16_f32 v47, v42, v43")
                    k("buffer_store_dwordx2 v[46:47], v14, s[12:15], %s offen offset:%d" % (so, cb * 64 + g * 16))
    k.label(lend)
    return k, 64 + 96, 64, nwg
```

```python
import sys, os
sys.path.insert(0, os.path.dirname(os.path.abspath(__file__)))
from genlib import *

STG = 36 * 1024
NSLOT = 4
LDS_BIAS = NSLOT * STG
LDS_TOTAL = LDS_BIAS + 2048

V_ADDR = 2
V_DMA = 4
V_OUT = 13
V_BADDR = 14
V_C1 = 15
V_LBASE = 16
V_BIAS = 20
V_P = 36
V_T = 52
V_W = 128
NW = 8
V_ACC = 160
V_ASP = 224


STAMP = bool(os.environ.get("STAMP"))


def stamp_init(k, wsreg):
    if not STAMP:
        return
    k.srd(52, wsreg, 1 << 20, 0x8000000)
    k("v_lshrrev_b32 v60, 6, v0")
    k("s_nop 1")
    k("v_readfirstlane_b32 s62, v60")
    k("s_lshl_b32 s63, s2, 2")
    k("s_add_u32 s62, s62, s63")
    k("s_lshl_b32 s62, s62, 6")
    stamp(k)


def stamp(k):
    if not STAMP:
        return
    k("s_memtime s[60:61]")
    k("s_waitcnt lgkmcnt(0)")
    k("v_mov_b32 v60, s60")
    k("v_mov_b32 v61, s62")
    k("buffer_store_dword v60, v61, s[52:55], 0 offen")
    k("s_add_u32 s62, s62, 4")


class Eng:
    def __init__(self, k, WC, epi, lda, ldw, ldo, PD=5, bias=False, ofrag=False):
        self.k = k
        self.RB = 2
        self.WC = WC
        self.KS = 36
        self.KH = 36 // WC
        self.SPB = WC
        self.epi = epi
        self.lda, self.ldw, self.ldo = lda, ldw, ldo
        self.PD = PD
        self.KB = self.KH - PD - 2
        self.bias = bias
        self.ofrag = ofrag
        self.rec = {}
        self.mute = False
        self.reset()

    def reset(self):
        self.vm, self.lg = [], []
        self.stage_no, self.frag_no = 0, 0
        self.carry = []
        self.site, self.nsite = None, 0

    def e(self, s):
        if not self.mute:
            self.k(s)

    def afrag(self, f):
        if f < 64:
            return "a[%d:%d]" % (4 * f, 4 * f + 3)
        r = V_ASP + 4 * (f - 64)
        return "v[%d:%d]" % (r, r + 3)

    def _wait(self, lst, tag, kind, cap):
        idx = None
        for i in range(len(lst) - 1, -1, -1):
            if lst[i] == tag:
                idx = i
                break
        key = (self.site, self.nsite, kind)
        self.nsite += 1
        n = None if idx is None else min(len(lst) - 1 - idx, cap)
        if self.mute:
            if n is not None:
                self.rec[key] = min(self.rec.get(key, 99), n)
        else:
            n = self.rec.get(key, None)
        if n is None:
            return 0
        keep = lst[len(lst) - n:] if n > 0 else []
        del lst[:]
        lst.extend(keep)
        self.e("s_waitcnt %s(%d)" % (kind, n))
        return 4

    def wait_vm(self, tag):
        return self._wait(self.vm, tag, "vmcnt", 63)

    def wait_lg(self, tag):
        return self._wait(self.lg, tag, "lgkmcnt", 15)

    def epi_stream(self, par):
        it = []
        A = V_ACC + 32 * par
        t = [V_T + i for i in range(4)]
        u = [V_T + 4 + i for i in range(4)]
        p = [V_T + 8, V_T + 9]
        if self.epi == 'gelu':
            for g in range(4):
                it.append(("ds_read_b128 v[%d:%d], v%d offset:%d" % (V_BIAS + 4 * g, V_BIAS + 4 * g + 3, V_BADDR, g * 32), 4, 'lg', ('bias', g)))
            it.append(("v_add_u32 v%d, %d, v%d" % (V_BADDR, 128 * self.WC, V_BADDR), 4, None, None))
        for rb in range(self.RB):
            P = V_P + 8 * (rb & 1)
            pos = {0: 0, 2: 2, 1: 4, 3: 6}
            if self.epi == 'f32':
                for g in range(4):
                    a = A + 16 * rb + 4 * g
                    it.append(("buffer_store_dwordx4 v[%d:%d], v%d, s[12:15], s%d offen offset:%d" % (a, a + 3, V_OUT, 21 + rb, g * 32), 8, 'vm', 'st'))
                continue
            for g in range(4):
                a = A + 16 * rb + 4 * g
                d0, d1 = P + pos[g], P + pos[g] + 1
                if self.epi == 'bf16':
                    it.append(("v_cvt_pk_bf16_f32 v%d, v%d, v%d" % (d0, a, a + 1), 4, None, None))
                    it.append(("v_cvt_pk_bf16_f32 v%d, v%d, v%d" % (d1, a + 2, a + 3), 4, None, None))
                    continue
                b = V_BIAS + 4 * g
                it.append(("v_cvt_pk_bf16_f32 v%d, v%d, v%d" % (p[0], a, a + 1), 4, None, None))
                it.append(("v_cvt_pk_bf16_f32 v%d, v%d, v%d" % (p[1], a + 2, a + 3), 4, None, None))
                def unpack():
                    it.append(("v_lshlrev_b32 v%d, 16, v%d" % (t[0], p[0]), 4, None, None))
                    it.append(("v_and_b32 v%d, 0xffff0000, v%d" % (t[1], p[0]), 4, None, None))
                    it.append(("v_lshlrev_b32 v%d, 16, v%d" % (t[2], p[1]), 4, None, None))
                    it.append(("v_and_b32 v%d, 0xffff0000, v%d" % (t[3], p[1]), 4, None, None))
                unpack()
                it.append((None, 0, 'waitlg', ('bias', g)))
                for i in range(4):
                    it.append(("v_add_f32 v%d, v%d, v%d" % (t[i], t[i], b + i), 4, None, None))
                it.append(("v_cvt_pk_bf16_f32 v%d, v%d, v%d" % (p[0], t[0], t[1]), 4, None, None))
                it.append(("v_cvt_pk_bf16_f32 v%d, v%d, v%d" % (p[1], t[2], t[3]), 4, None, None))
                unpack()
                for i in range(4):
                    it.append(("v_mul_f32 v%d, v%d, v%d" % (u[i], t[i], t[i]), 4, None, None))
                for i in range(4):
                    it.append(("v_fma_f32 v%d, v%d, s24, v%d" % (u[i], u[i], V_C1), 4, None, None))
                for i in range(4):
                    it.append(("v_mul_f32 v%d, v%d, v%d" % (u[i], u[i], t[i]), 4, None, None))
                for i in range(4):
                    it.append(("v_exp_f32 v%d, v%d" % (u[i], u[i]), 8, None, None))
                for i in range(4):
                    it.append(("v_add_f32 v%d, 1.0, v%d" % (u[i], u[i]), 4, None, None))
                for i in range(4):
                    it.append(("v_rcp_f32 v%d, v%d" % (u[i], u[i]), 8, None, None))
                for i in range(4):
                    it.append(("v_mul_f32 v%d, v%d, v%d" % (t[i], t[i], u[i]), 4, None, None))
                it.append(("v_cvt_pk_bf16_f32 v%d, v%d, v%d" % (d0, t[0], t[1]), 4, None, None))
                it.append(("v_cvt_pk_bf16_f32 v%d, v%d, v%d" % (d1, t[2], t[3]), 4, None, None))
            it.append(("s_nop 1", 4, None, None))
            for j in range(2):
                it.append(("v_permlane32_swap_b32 v%d, v%d" % (P + j, P + 2 + j), 4, None, None))
                it.append(("v_permlane32_swap_b32 v%d, v%d" % (P + 4 + j, P + 6 + j), 4, None, None))
            o2 = 512 if self.ofrag else 16
            it.append(("buffer_store_dwordx4 v[%d:%d], v%d, s[12:15], s%d offen" % (P, P + 3, V_OUT, 21 + rb), 8, 'vm', 'st'))
            it.append(("buffer_store_dwordx4 v[%d:%d], v%d, s[12:15], s%d offen offset:%d" % (P + 4, P + 7, V_OUT, 21 + rb, o2), 8, 'vm', 'st'))
        step = (128 if self.epi == 'f32' else (2048 if self.ofrag else 64)) * self.WC
        it.append(("s_add_u32 s21, s21, %d" % step, 4, None, None))
        it.append(("s_add_u32 s22, s22, %d" % step, 4, None, None))
        return it

    def put(self, item):
        txt, cost, kind, tag = item
        if kind == 'waitlg':
            return self.wait_lg(tag)
        self.e(txt)
        if kind == 'lg':
            self.lg.append(tag)
        elif kind == 'vm':
            self.vm.append(tag)
        return cost

    def frag_read(self, q, ks):
        slot = self.frag_no % NW
        r = V_W + 4 * slot
        for h in range(2):
            self.e("ds_read_b64_tr_b16 v[%d:%d], v%d offset:%d" % (r + 2 * h, r + 2 * h + 1, V_ADDR + q, ks * 1024 * self.WC + h * 256))
            self.lg.append(('w', self.frag_no))
        self.frag_no += 1

    def stage_pos(self, st):
        return st // self.SPB, st % self.SPB

    def dma_setup(self, i):
        blk, kh = self.stage_pos(i + 3)
        self.e("s_cmp_ge_u32 s17, %d" % blk)
        self.e("s_cselect_b32 s10, s16, 0")
        self.e("s_add_u32 s25, s19, s23")
        self.e("s_add_u32 s27, s20, %d" % (blk * 64 * self.WC + kh * self.KH * 16 * self.ldw))
        self.e("s_add_u32 s19, s19, %d" % STG)
        self.e("s_cmp_eq_u32 s19, %d" % (NSLOT * STG))
        self.e("s_cselect_b32 s19, 0, s19")
        tag = ('dma', self.stage_no + 3)
        groups = []
        for j in range(0 if os.environ.get("NODMA") else 9):
            groups.append((j, tag))
            for d in range(self.DSP - 1):
                groups.append(None)
        return groups

    def dma_site(self, site):
        if site is None:
            return
        j, tag = site
        self.e("s_add_u32 m0, s25, %d" % (j * 1024))
        self.e("s_nop 0")
        self.e("buffer_load_dwordx4 v%d, s[8:11], s27 offen lds" % (V_DMA + j))
        self.vm.append(tag)

    def body(self, par, with_epi, first=False):
        self.site = (par, with_epi)
        self.nsite = 0
        RB, PD = self.RB, self.PD
        fill = self.epi_stream(1 - par) if with_epi else []
        total = sum(x[1] for x in fill)
        ngap = 72
        done = 0
        fi = 0
        gap = 0
        A = V_ACC + 32 * par
        for i in range(self.SPB):
            q = self.stage_no & 1
            for ks in range(self.KH):
                kglob = i * self.KH + ks
                fragno = self.frag_no - PD
                w = V_W + 4 * (fragno % NW)
                for rb in range(RB):
                    if rb == 0:
                        self.wait_lg(('w', fragno))
                    if first:
                        self.wait_vm(('a', kglob, rb))
                    acc = "v[%d:%d]" % (A + 16 * rb, A + 16 * rb + 15)
                    srcc = "0" if kglob == 0 else acc
                    self.e("v_mfma_f32_32x32x16_bf16 %s, v[%d:%d], %s, %s" % (acc, w, w + 3, self.afrag(rb * self.KS + kglob), srcc))
                    if rb == 0:
                        if ks == self.KB:
                            while self.carry:
                                self.dma_site(self.carry.pop(0))
                            self.wait_vm(('dma', self.stage_no + 1))
                            if not os.environ.get("NOBAR"):
                                self.e("s_barrier")
                            self.e("s_add_u32 s18, s18, %d" % STG)
                            self.e("s_cmp_eq_u32 s18, %d" % (NSLOT * STG))
                            self.e("s_cselect_b32 s18, 0, s18")
                            self.e("v_add_u32 v%d, s18, v%d" % (V_ADDR + (1 - q), V_LBASE))
                            self.carry = self.dma_setup(i)
                            self.carry_gap = 0
                        nk = ks + PD
                        if nk < self.KH:
                            self.frag_read(q, nk)
                        else:
                            self.frag_read(1 - q, nk - self.KH)
                    if self.carry and (rb == 1 or self.WC == 2) and not (rb == 0 and ks == self.KB):
                        self.dma_site(self.carry.pop(0))
                    gap += 1
                    if gap >= 3:
                        target = total * (gap - 2) / (ngap - 4)
                        while fi < len(fill) and (done < target):
                            self.put(fill[fi]); fi += 1
                            done += fill[fi - 1][1]
            self.stage_no += 1
        while fi < len(fill):
            self.put(fill[fi]); fi += 1
        self.e("s_add_u32 s20, s20, %d" % (64 * self.WC))

    def drain(self, par):
        self.e("s_nop 15")
        for item in self.epi_stream(par):
            txt, cost, kind, tag = item
            if kind == 'waitlg':
                self.e("s_waitcnt lgkmcnt(0)")
            else:
                self.e(txt)

    def run(self, tagname):
        k = self.k
        self.DSP = 4 if self.WC == 1 else 4
        self.mute = True
        for w in range(1):
            self.simw = w
            self.reset()
            self.prologue()
            self.body(0, False, True)
            for it in range(6):
                self.body(1, True)
                self.body(0, True)
        self.mute = False
        self.reset()
        l_loop = k.newlabel("loop" + tagname)
        l_d0 = k.newlabel("drain0" + tagname)
        l_d1 = k.newlabel("drain1" + tagname)
        l_end = k.newlabel("fin" + tagname)
        self.prologue()
        stamp(k)
        self.body(0, False, True)
        stamp(k)
        k("s_cmp_eq_u32 s17, 0")
        k("s_cbranch_scc1 %s" % l_d0)
        k("s_sub_u32 s17, s17, 1")
        k.label(l_loop)
        self.body(1, True)
        stamp(k)
        k("s_cmp_eq_u32 s17, 0")
        k("s_cbranch_scc1 %s" % l_d1)
        k("s_sub_u32 s17, s17, 1")
        self.body(0, True)
        stamp(k)
        k("s_cmp_eq_u32 s17, 0")
        k("s_cbranch_scc1 %s" % l_d0)
        k("s_sub_u32 s17, s17, 1")
        k("s_branch %s" % l_loop)
        k.label(l_d0)
        self.drain(0)
        k("s_branch %s" % l_end)
        k.label(l_d1)
        self.drain(1)
        k.label(l_end)
        if STAMP:
            k("s_waitcnt vmcnt(0)")
        stamp(k)

    def prologue(self):
        e = self.e
        WC = self.WC
        self.site, self.nsite = ('pro',), 0
        e("""
        v_lshrrev_b32 v17, 6, v0
        v_and_b32 v1, 63, v0
        v_readfirstlane_b32 s26, v17
        v_lshrrev_b32 v18, 5, v1
        v_and_b32 v19, 31, v1
        """)
        if WC == 2:
            e("s_lshr_b32 s35, s26, 1")
            e("s_and_b32 s36, s26, 1")
        else:
            e("s_mov_b32 s35, s26")
            e("s_mov_b32 s36, 0")
        if self.bias:
            e("v_lshlrev_b32 v%d, 1, v0" % V_T)
            e("buffer_load_ushort v%d, v%d, s[48:51], s34 offen" % (V_T + 1, V_T))
            e("buffer_load_ushort v%d, v%d, s[48:51], s34 offen offset:512" % (V_T + 3, V_T))
            self.vm.append('bias')
            self.vm.append('bias')
        e("s_mul_i32 s23, s26, %d" % (9 * 1024))
        e("s_movk_i32 s27, %d" % self.ldw)
        if WC == 1:
            e("s_mul_i32 s25, s26, %d" % (9 * 16))
            e("v_lshrrev_b32 v17, 2, v1")
            e("v_add_u32 v17, s25, v17")
            e("v_mul_lo_u32 v17, v17, s27")
            e("v_and_b32 v%d, 3, v1" % V_DMA)
            e("v_lshl_add_u32 v%d, v%d, 4, v17" % (V_DMA, V_DMA))
            rstep = 16
        else:
            e("s_mul_i32 s25, s26, %d" % (9 * 8))
            e("v_bfe_u32 v17, v1, 2, 3")
            e("v_add_u32 v17, s25, v17")
            e("v_mul_lo_u32 v17, v17, s27")
            e("v_lshl_add_u32 v17, v18, 6, v17")
            e("v_and_b32 v%d, 3, v1" % V_DMA)
            e("v_lshl_add_u32 v%d, v%d, 4, v17" % (V_DMA, V_DMA))
            rstep = 8
        for j in range(1, 9):
            e("v_add_u32 v%d, 0x%x, v%d" % (V_DMA + j, rstep * self.ldw, V_DMA + j - 1))

        def dma(st):
            blk, kh = self.stage_pos(st)
            e("s_cmp_ge_u32 s17, %d" % blk)
            e("s_cselect_b32 s10, s16, 0")
            e("s_add_u32 s27, s20, %d" % (blk * 64 * WC + kh * self.KH * 16 * self.ldw))
            for j in range(9):
                e("s_add_u32 m0, s23, %d" % (st * STG + j * 1024))
                e("s_nop 0")
                e("buffer_load_dwordx4 v%d, s[8:11], s27 offen lds" % (V_DMA + j))
                self.vm.append(('dma', st))
        dma(0)
        e("s_mul_i32 s25, s35, %d" % (2 * self.lda))
        e("s_add_u32 s25, s25, s28")
        e("s_add_u32 s37, s25, %d" % self.lda)
        e("v_lshlrev_b32 v17, 4, v1")
        for ks in range(self.KS):
            if ks % 4 == 0 and ks:
                e("s_add_u32 s25, s25, 4096")
                e("s_add_u32 s37, s37, 4096")
            for rb in range(2):
                e("buffer_load_dwordx4 %s, v17, s[4:7], s%d offen offset:%d" % (self.afrag(rb * self.KS + ks), 25 if rb == 0 else 37, (ks % 4) * 1024))
                self.vm.append(('a', ks, rb))
        dma(1)
        dma(2)
        e("s_mov_b32 s19, %d" % (3 * STG))
        e("v_bfe_u32 v%d, v1, 2, 2" % (V_T + 2))
        e("v_lshlrev_b32 v%d, 6, v%d" % (V_LBASE, V_T + 2))
        e("v_lshl_add_u32 v%d, v18, %d, v%d" % (V_LBASE, 9 if WC == 1 else 10, V_LBASE))
        e("v_bfe_u32 v%d, v1, 4, 1" % (V_T + 2))
        e("v_lshl_add_u32 v%d, v%d, 5, v%d" % (V_LBASE, V_T + 2, V_LBASE))
        e("v_and_b32 v%d, 3, v1" % (V_T + 2))
        e("v_lshl_add_u32 v%d, v%d, 3, v%d" % (V_LBASE, V_T + 2, V_LBASE))
        if WC == 2:
            e("s_lshl_b32 s27, s36, 9")
            e("v_add_u32 v%d, s27, v%d" % (V_LBASE, V_LBASE))
        e("v_mov_b32 v%d, v%d" % (V_ADDR, V_LBASE))
        e("s_mov_b32 s18, 0")
        if self.ofrag:
            e("v_lshlrev_b32 v%d, 4, v19" % V_OUT)
            e("v_lshl_add_u32 v%d, v18, 10, v%d" % (V_OUT, V_OUT))
            e("s_mul_i32 s21, s35, %d" % (2 * self.ldo))
            e("s_add_u32 s21, s21, s29")
            e("s_lshl_b32 s27, s36, 11")
            e("s_add_u32 s21, s21, s27")
            e("s_add_u32 s22, s21, %d" % self.ldo)
        else:
            e("s_lshl_b32 s27, s35, 6")
            e("v_add_u32 v%d, s27, v19" % V_OUT)
            e("s_movk_i32 s27, %d" % self.ldo)
            e("v_mul_lo_u32 v%d, v%d, s27" % (V_OUT, V_OUT))
            e("v_lshl_add_u32 v%d, v18, %d, v%d" % (V_OUT, 4 if self.epi == 'f32' else 5, V_OUT))
            e("s_lshl_b32 s27, s36, %d" % (7 if self.epi == 'f32' else 6))
            e("s_add_u32 s21, s29, s27")
            e("s_add_u32 s22, s21, %d" % (32 * self.ldo))
        if self.bias:
            e("v_lshlrev_b32 v%d, 4, v18" % V_BADDR)
            e("s_lshl_b32 s27, s36, 7")
            e("s_add_u32 s27, s27, 0x%x" % LDS_BIAS)
            e("v_add_u32 v%d, s27, v%d" % (V_BADDR, V_BADDR))
            e("v_mov_b32 v%d, 0xc0135761" % V_C1)
            e("s_mov_b32 s24, 0xbdd2d3e8")
        self.wait_vm(('dma', 0))
        if self.bias:
            e("v_lshlrev_b32 v%d, 16, v%d" % (V_T + 1, V_T + 1))
            e("v_lshlrev_b32 v%d, 2, v0" % V_T)
            e("v_add_u32 v%d, 0x%x, v%d" % (V_T, LDS_BIAS, V_T))
            e("ds_write_b32 v%d, v%d" % (V_T, V_T + 1))
            e("v_lshlrev_b32 v%d, 16, v%d" % (V_T + 3, V_T + 3))
            e("ds_write_b32 v%d, v%d offset:1024" % (V_T, V_T + 3))
            e("s_waitcnt lgkmcnt(0)")
        e("s_barrier")
        for ks in range(self.PD):
            self.frag_read(0, ks)


def gen_g1(WC=2):
    k = K("g1_kernel")
    lend = k.newlabel("end")
    k("s_cmp_ge_u32 s2, 256")
    k("s_cbranch_scc1 %s" % lend)
    k.load_ptr(P_WS, 40)
    k.load_ptr(IN_WQKV, 42)
    k.load_ptr(IN_W1, 44)
    k.load_ptr(IN_B1, 46)
    if WC == 1:
        NQ, QB, QLAST, HB = 7, 8, 6, 6
        k("""
        s_and_b32 s35, s2, 7
        s_lshl_b32 s35, s35, 2
        s_lshr_b32 s36, s2, 6
        s_add_u32 s35, s35, s36
        s_bfe_u32 s36, s2, 0x30003
        s_cmp_eq_u32 s35, 31
        """)
        k("s_cbranch_scc1 %s" % lend)
        k("s_lshl_b32 s36, s36, 8")
    else:
        NQ, QB, QLAST, HB = 4, 7, 6, 6
        k("""
        s_and_b32 s35, s2, 7
        s_lshl_b32 s35, s35, 1
        s_lshr_b32 s36, s2, 7
        s_add_u32 s35, s35, s36
        s_bfe_u32 s36, s2, 0x40003
        s_lshl_b32 s36, s36, 7
        """)
    k("s_waitcnt lgkmcnt(0)")
    stamp_init(k, 40)
    k.srd(4, 40, S * D * 2, WS_XN)
    k("s_mul_i32 s28, s36, %d" % (D * 2))
    lh = k.newlabel("hpart")
    k("s_cmp_ge_u32 s35, %d" % NQ)
    k("s_cbranch_scc1 %s" % lh)
    k.srd(8, 42, D * 3 * D * 2)
    k("s_mov_b32 s16, s10")
    k.srd(12, 40, S * 3 * D * 2, WS_QKV)
    k("s_mul_i32 s20, s35, %d" % (QB * 64 * WC))
    k("s_cmp_eq_u32 s35, %d" % (NQ - 1))
    k("s_cselect_b32 s17, %d, %d" % (QLAST - 1, QB - 1))
    k("s_mul_i32 s29, s36, %d" % (3 * D * 2))
    k("s_add_u32 s29, s29, s20")
    e = Eng(k, WC, 'bf16', 36864, 3 * D * 2, 3 * D * 2)
    e.run("q")
    k("s_branch %s" % lend)
    k.label(lh)
    k.srd(8, 44, D * F * 2)
    k("s_mov_b32 s16, s10")
    k.srd(12, 40, S * F * 2, WS_H)
    k.srd(48, 46, F * 2)
    k("s_sub_u32 s35, s35, %d" % NQ)
    k("s_mul_i32 s20, s35, %d" % (HB * 64 * WC))
    k("s_mov_b32 s34, s20")
    k("s_mov_b32 s17, %d" % (HB - 1))
    k("s_mul_i32 s29, s36, %d" % (F * 2))
    k("s_add_u32 s29, s29, s20")
    e = Eng(k, WC, 'gelu', 36864, F * 2, F * 2, bias=True)
    e.run("h")
    k.label(lend)
    return k


def main():
    nsplit = 5
    kerns = []
    launches = []
    k, v = gen_ln(); kerns.append(k.text(v)); launches.append((k.name, 512, 0))
    k = gen_g1(int(os.environ.get('WC', '2'))); kerns.append(k.text(512, accum=256)); launches.append((k.name, 256, LDS_TOTAL))
    k, v = gen_attn(); kerns.append(k.text(v)); launches.append((k.name, 256, 0))
    k, v, acc, nwg = gen_gemm("g2_kernel", 'g2'); kerns.append(k.text(v, accum=acc)); launches.append((k.name, nwg, 2 * STAGE))
    k, v, acc, nwg = gen_gemm("g3_kernel", 'g3', nsplit); kerns.append(k.text(v, accum=acc)); launches.append((k.name, nwg, 2 * STAGE))
    k, v = gen_final(nsplit); kerns.append(k.text(v)); launches.append((k.name, S * D // 4 // 256, 0))
    out = []
    for (n, g, lds) in launches:
        out.append("; @launch kernel=%s grid=(%d,1,1) block=(256,1,1) lds=%d" % (n, g, lds))
    out.append('.amdgcn_target "amdgcn-amd-amdhsa--gfx950"')
    out.append(".text")
    for t, d in kerns:
        out.append(t)
    out.append('.section .rodata,"a"')
    for t, d in kerns:
        out.append(".p2align 6")
        out.append(d)
    fn = sys.argv[1] if len(sys.argv) > 1 else "cdna_kernels/%s.s" % NAME
    open(fn, "w").write("\n".join(out) + "\n")


if __name__ == "__main__":
    main()
```

```python
import sys, os
sys.path.insert(0, os.path.dirname(os.path.abspath(__file__)))
from genlib import *

STG = 36 * 1024
NSLOT = 4
LDS_BIAS = NSLOT * STG
LDS_TOTAL = LDS_BIAS + 2048

V_ADDR = 2
V_DMA = 4
V_OUT = 13
V_BADDR = 14
V_C1 = 15
V_LBASE = 16
V_BIAS = 20
V_P = 36
V_T = 52
V_W = 128
NW = 8
V_ACC = 160
V_ASP = 224


STAMP = bool(os.environ.get("STAMP"))


def stamp_init(k, wsreg):
    if not STAMP:
        return
    k.srd(52, wsreg, 1 << 20, 0x8000000)
    k("v_lshrrev_b32 v60, 6, v0")
    k("s_nop 1")
    k("v_readfirstlane_b32 s62, v60")
    k("s_lshl_b32 s63, s2, 2")
    k("s_add_u32 s62, s62, s63")
    k("s_lshl_b32 s62, s62, 6")
    stamp(k)


def stamp(k):
    if not STAMP:
        return
    k("s_memtime s[60:61]")
    k("s_waitcnt lgkmcnt(0)")
    k("v_mov_b32 v60, s60")
    k("v_mov_b32 v61, s62")
    k("buffer_store_dword v60, v61, s[52:55], 0 offen")
    k("s_add_u32 s62, s62, 4")


class Eng:
    def __init__(self, k, WC, epi, lda, ldw, ldo, PD=5, bias=False, ofrag=False, RB=2):
        self.k = k
        self.RB = RB
        self.WC = WC
        self.KS = 72 // RB
        self.KH = 36 // WC
        self.SPB = self.KS // self.KH
        self.epi = epi
        self.lda, self.ldw, self.ldo = lda, ldw, ldo
        self.PD = PD
        self.KB = self.KH - PD - 2
        self.bias = bias
        self.ofrag = ofrag
        self.rec = {}
        self.mute = False
        self.reset()

    def reset(self):
        self.vm, self.lg = [], []
        self.stage_no, self.frag_no = 0, 0
        self.carry = []
        self.site, self.nsite = None, 0

    def e(self, s):
        if not self.mute:
            self.k(s)

    def afrag(self, f):
        if f < 64:
            return "a[%d:%d]" % (4 * f, 4 * f + 3)
        r = V_ASP + 4 * (f - 64)
        return "v[%d:%d]" % (r, r + 3)

    def _wait(self, lst, tag, kind, cap):
        idx = None
        for i in range(len(lst) - 1, -1, -1):
            if lst[i] == tag:
                idx = i
                break
        key = (self.site, self.nsite, kind)
        self.nsite += 1
        n = None if idx is None else min(len(lst) - 1 - idx, cap)
        if self.mute:
            if n is not None:
                self.rec[key] = min(self.rec.get(key, 99), n)
        else:
            n = self.rec.get(key, None)
        if n is None:
            return 0
        keep = lst[len(lst) - n:] if n > 0 else []
        del lst[:]
        lst.extend(keep)
        self.e("s_waitcnt %s(%d)" % (kind, n))
        return 4

    def wait_vm(self, tag):
        return self._wait(self.vm, tag, "vmcnt", 63)

    def wait_lg(self, tag):
        return self._wait(self.lg, tag, "lgkmcnt", 15)

    def epi_stream(self, par):
        it = []
        A = V_ACC + 32 * par
        t = [V_T + i for i in range(4)]
        u = [V_T + 4 + i for i in range(4)]
        p = [V_T + 8, V_T + 9]
        if self.epi == 'gelu':
            for g in range(4):
                it.append(("ds_read_b128 v[%d:%d], v%d offset:%d" % (V_BIAS + 4 * g, V_BIAS + 4 * g + 3, V_BADDR, g * 32), 4, 'lg', ('bias', g)))
            it.append(("v_add_u32 v%d, %d, v%d" % (V_BADDR, 128 * self.WC, V_BADDR), 4, None, None))
        for rb in range(self.RB):
            P = V_P + 8 * (rb & 1)
            pos = {0: 0, 2: 2, 1: 4, 3: 6}
            if self.epi == 'f32':
                for g in range(4):
                    a = A + 16 * rb + 4 * g
                    it.append(("buffer_store_dwordx4 v[%d:%d], v%d, s[12:15], s%d offen offset:%d" % (a, a + 3, V_OUT, 21 + rb, g * (1024 if self.ofrag else 32)), 8, 'vm', 'st'))
                continue
            for g in range(4):
                a = A + 16 * rb + 4 * g
                d0, d1 = P + pos[g], P + pos[g] + 1
                if self.epi == 'bf16':
                    it.append(("v_cvt_pk_bf16_f32 v%d, v%d, v%d" % (d0, a, a + 1), 4, None, None))
                    it.append(("v_cvt_pk_bf16_f32 v%d, v%d, v%d" % (d1, a + 2, a + 3), 4, None, None))
                    continue
                b = V_BIAS + 4 * g
                it.append(("v_cvt_pk_bf16_f32 v%d, v%d, v%d" % (p[0], a, a + 1), 4, None, None))
                it.append(("v_cvt_pk_bf16_f32 v%d, v%d, v%d" % (p[1], a + 2, a + 3), 4, None, None))
                def unpack():
                    it.append(("v_lshlrev_b32 v%d, 16, v%d" % (t[0], p[0]), 4, None, None))
                    it.append(("v_and_b32 v%d, 0xffff0000, v%d" % (t[1], p[0]), 4, None, None))
                    it.append(("v_lshlrev_b32 v%d, 16, v%d" % (t[2], p[1]), 4, None, None))
                    it.append(("v_and_b32 v%d, 0xffff0000, v%d" % (t[3], p[1]), 4, None, None))
                unpack()
                it.append((None, 0, 'waitlg', ('bias', g)))
                for i in range(4):
                    it.append(("v_add_f32 v%d, v%d, v%d" % (t[i], t[i], b + i), 4, None, None))
                it.append(("v_cvt_pk_bf16_f32 v%d, v%d, v%d" % (p[0], t[0], t[1]), 4, None, None))
                it.append(("v_cvt_pk_bf16_f32 v%d, v%d, v%d" % (p[1], t[2], t[3]), 4, None, None))
                unpack()
                for i in range(4):
                    it.append(("v_mul_f32 v%d, v%d, v%d" % (u[i], t[i], t[i]), 4, None, None))
                for i in range(4):
                    it.append(("v_fma_f32 v%d, v%d, s24, v%d" % (u[i], u[i], V_C1), 4, None, None))
                for i in range(4):
                    it.append(("v_mul_f32 v%d, v%d, v%d" % (u[i], u[i], t[i]), 4, None, None))
                for i in range(4):
                    it.append(("v_exp_f32 v%d, v%d" % (u[i], u[i]), 8, None, None))
                for i in range(4):
                    it.append(("v_add_f32 v%d, 1.0, v%d" % (u[i], u[i]), 4, None, None))
                for i in range(4):
                    it.append(("v_rcp_f32 v%d, v%d" % (u[i], u[i]), 8, None, None))
                for i in range(4):
                    it.append(("v_mul_f32 v%d, v%d, v%d" % (t[i], t[i], u[i]), 4, None, None))
                it.append(("v_cvt_pk_bf16_f32 v%d, v%d, v%d" % (d0, t[0], t[1]), 4, None, None))
                it.append(("v_cvt_pk_bf16_f32 v%d, v%d, v%d" % (d1, t[2], t[3]), 4, None, None))
            it.append(("s_nop 1", 4, None, None))
            for j in range(2):
                it.append(("v_permlane32_swap_b32 v%d, v%d" % (P + j, P + 2 + j), 4, None, None))
                it.append(("v_permlane32_swap_b32 v%d, v%d" % (P + 4 + j, P + 6 + j), 4, None, None))
            o2 = 512 if self.ofrag else 16
            it.append(("buffer_store_dwordx4 v[%d:%d], v%d, s[12:15], s%d offen" % (P, P + 3, V_OUT, 21 + rb), 8, 'vm', 'st'))
            it.append(("buffer_store_dwordx4 v[%d:%d], v%d, s[12:15], s%d offen offset:%d" % (P + 4, P + 7, V_OUT, 21 + rb, o2), 8, 'vm', 'st'))
        if self.epi == 'f32':
            step = (4096 if self.ofrag else 128) * self.WC
        else:
            step = (2048 if self.ofrag else 64) * self.WC
        it.append(("s_add_u32 s21, s21, %d" % step, 4, None, None))
        it.append(("s_add_u32 s22, s22, %d" % step, 4, None, None))
        return it

    def put(self, item):
        txt, cost, kind, tag = item
        if kind == 'waitlg':
            return self.wait_lg(tag)
        self.e(txt)
        if kind == 'lg':
            self.lg.append(tag)
        elif kind == 'vm':
            self.vm.append(tag)
        return cost

    def frag_read(self, q, ks):
        slot = self.frag_no % NW
        r = V_W + 4 * slot
        for h in range(2):
            self.e("ds_read_b64_tr_b16 v[%d:%d], v%d offset:%d" % (r + 2 * h, r + 2 * h + 1, V_ADDR + q, ks * 1024 * self.WC + h * 256))
            self.lg.append(('w', self.frag_no))
        self.frag_no += 1

    def stage_pos(self, st):
        return st // self.SPB, st % self.SPB

    def dma_setup(self, i):
        blk, kh = self.stage_pos(i + 3)
        self.e("s_cmp_ge_u32 s17, %d" % blk)
        self.e("s_cselect_b32 s10, s16, 0")
        self.e("s_add_u32 s25, s19, s23")
        self.e("s_add_u32 s27, s20, %d" % (blk * 64 * self.WC + kh * self.KH * 16 * self.ldw))
        self.e("s_add_u32 s19, s19, %d" % STG)
        self.e("s_cmp_eq_u32 s19, %d" % (NSLOT * STG))
        self.e("s_cselect_b32 s19, 0, s19")
        tag = ('dma', self.stage_no + 3)
        groups = []
        for j in range(0 if os.environ.get("NODMA") else 9):
            groups.append((j, tag))
            for d in range(self.DSP - 1):
                groups.append(None)
        return groups

    def dma_site(self, site):
        if site is None:
            return
        j, tag = site
        self.e("s_add_u32 m0, s25, %d" % (j * 1024))
        self.e("s_nop 0")
        self.e("buffer_load_dwordx4 v%d, s[8:11], s27 offen lds" % (V_DMA + j))
        self.vm.append(tag)

    def a_load(self, ks):
        e = self.e
        if ks % 4 == 0 and ks:
            e("s_add_u32 s38, s38, 4096")
            e("s_add_u32 s39, s39, 4096")
        for rb in range(self.RB):
            e("buffer_load_dwordx4 %s, v17, s[4:7], s%d offen offset:%d" % (self.afrag(rb * self.KS + ks), 38 if rb == 0 else 39, (ks % 4) * 1024))
            self.vm.append(('a', ks, rb))

    def body(self, par, with_epi, first=False):
        self.site = (par, with_epi)
        self.nsite = 0
        RB, PD = self.RB, self.PD
        fill = self.epi_stream(1 - par) if with_epi else []
        total = sum(x[1] for x in fill)
        ngap = 72
        done = 0
        fi = 0
        gap = 0
        A = V_ACC + 32 * par
        for i in range(self.SPB):
            q = self.stage_no & 1
            for ks in range(self.KH):
                kglob = i * self.KH + ks
                fragno = self.frag_no - PD
                w = V_W + 4 * (fragno % NW)
                for rb in range(RB):
                    if rb == 0:
                        self.wait_lg(('w', fragno))
                    if first:
                        self.wait_vm(('a', kglob, rb))
                    acc = "v[%d:%d]" % (A + 16 * rb, A + 16 * rb + 15)
                    srcc = "0" if kglob == 0 else acc
                    self.e("v_mfma_f32_32x32x16_bf16 %s, v[%d:%d], %s, %s" % (acc, w, w + 3, self.afrag(rb * self.KS + kglob), srcc))
                    if first and rb == RB - 1:
                        if kglob + self.PA < self.KS:
                            self.a_load(kglob + self.PA)
                        if kglob == self.D1:
                            self.pro_dma(1)
                        if kglob == self.D2:
                            self.pro_dma(2)
                    if rb == 0:
                        if ks == self.KB:
                            while self.carry:
                                self.dma_site(self.carry.pop(0))
                            self.wait_vm(('dma', self.stage_no + 1))
                            if not os.environ.get("NOBAR"):
                                self.e("s_barrier")
                            self.e("s_add_u32 s18, s18, %d" % STG)
                            self.e("s_cmp_eq_u32 s18, %d" % (NSLOT * STG))
                            self.e("s_cselect_b32 s18, 0, s18")
                            self.e("v_add_u32 v%d, s18, v%d" % (V_ADDR + (1 - q), V_LBASE))
                            self.carry = self.dma_setup(i)
                            self.carry_gap = 0
                        nk = ks + PD
                        if nk < self.KH:
                            self.frag_read(q, nk)
                        else:
                            self.frag_read(1 - q, nk - self.KH)
                    if self.carry and (rb == 1 or self.WC == 2 or RB == 1) and not (rb == 0 and ks == self.KB):
                        self.dma_site(self.carry.pop(0))
                    gap += 1
                    if gap >= 3:
                        target = total * (gap - 2) / (ngap - 4)
                        while fi < len(fill) and (done < target):
                            self.put(fill[fi]); fi += 1
                            done += fill[fi - 1][1]
            self.stage_no += 1
        while fi < len(fill):
            self.put(fill[fi]); fi += 1
        self.e("s_add_u32 s20, s20, %d" % (64 * self.WC))

    def drain(self, par):
        self.e("s_nop 15")
        for item in self.epi_stream(par):
            txt, cost, kind, tag = item
            if kind == 'waitlg':
                self.e("s_waitcnt lgkmcnt(0)")
            else:
                self.e(txt)

    def run(self, tagname):
        k = self.k
        self.DSP = 4 if self.RB == 2 else int(os.environ.get("DSP1", "3"))
        self.D1 = int(os.environ.get("D1", "6" if self.WC == 1 else "0"))
        self.D2 = int(os.environ.get("D2", "16" if self.WC == 1 else "6"))
        if self.RB == 1:
            self.D1 = int(os.environ.get("D1R", "4"))
            self.D2 = int(os.environ.get("D2R", "20"))
        self.mute = True
        for w in range(1):
            self.simw = w
            self.reset()
            self.prologue()
            self.body(0, False, True)
            for it in range(6):
                self.body(1, True)
                self.body(0, True)
        self.mute = False
        self.reset()
        l_loop = k.newlabel("loop" + tagname)
        l_d0 = k.newlabel("drain0" + tagname)
        l_d1 = k.newlabel("drain1" + tagname)
        l_end = k.newlabel("fin" + tagname)
        self.prologue()
        stamp(k)
        self.body(0, False, True)
        stamp(k)
        k("s_cmp_eq_u32 s17, 0")
        k("s_cbranch_scc1 %s" % l_d0)
        k("s_sub_u32 s17, s17, 1")
        k.label(l_loop)
        self.body(1, True)
        stamp(k)
        k("s_cmp_eq_u32 s17, 0")
        k("s_cbranch_scc1 %s" % l_d1)
        k("s_sub_u32 s17, s17, 1")
        self.body(0, True)
        stamp(k)
        k("s_cmp_eq_u32 s17, 0")
        k("s_cbranch_scc1 %s" % l_d0)
        k("s_sub_u32 s17, s17, 1")
        k("s_branch %s" % l_loop)
        k.label(l_d0)
        self.drain(0)
        k("s_branch %s" % l_end)
        k.label(l_d1)
        self.drain(1)
        k.label(l_end)
        if STAMP:
            k("s_waitcnt vmcnt(0)")
        stamp(k)

    def prologue(self):
        e = self.e
        WC = self.WC
        self.site, self.nsite = ('pro',), 0
        e("""
        v_lshrrev_b32 v17, 6, v0
        v_and_b32 v1, 63, v0
        v_readfirstlane_b32 s26, v17
        v_lshrrev_b32 v18, 5, v1
        v_and_b32 v19, 31, v1
        """)
        if WC == 2:
            e("s_lshr_b32 s35, s26, 1")
            e("s_and_b32 s36, s26, 1")
        else:
            e("s_mov_b32 s35, s26")
            e("s_mov_b32 s36, 0")
        if self.bias:
            e("v_lshlrev_b32 v%d, 1, v0" % V_T)
            e("buffer_load_ushort v%d, v%d, s[48:51], s34 offen" % (V_T + 1, V_T))
            e("buffer_load_ushort v%d, v%d, s[48:51], s34 offen offset:512" % (V_T + 3, V_T))
            self.vm.append('bias')
            self.vm.append('bias')
        e("s_mul_i32 s23, s26, %d" % (9 * 1024))
        e("s_movk_i32 s27, %d" % self.ldw)
        if WC == 1:
            e("s_mul_i32 s25, s26, %d" % (9 * 16))
            e("v_lshrrev_b32 v17, 2, v1")
            e("v_add_u32 v17, s25, v17")
            e("v_mul_lo_u32 v17, v17, s27")
            e("v_and_b32 v%d, 3, v1" % V_DMA)
            e("v_lshl_add_u32 v%d, v%d, 4, v17" % (V_DMA, V_DMA))
            rstep = 16
        else:
            e("s_mul_i32 s25, s26, %d" % (9 * 8))
            e("v_bfe_u32 v17, v1, 2, 3")
            e("v_add_u32 v17, s25, v17")
            e("v_mul_lo_u32 v17, v17, s27")
            e("v_lshl_add_u32 v17, v18, 6, v17")
            e("v_and_b32 v%d, 3, v1" % V_DMA)
            e("v_lshl_add_u32 v%d, v%d, 4, v17" % (V_DMA, V_DMA))
            rstep = 8
        for j in range(1, 9):
            e("v_add_u32 v%d, 0x%x, v%d" % (V_DMA + j, rstep * self.ldw, V_DMA + j - 1))

        def dma(st):
            blk, kh = self.stage_pos(st)
            e("s_cmp_ge_u32 s17, %d" % blk)
            e("s_cselect_b32 s10, s16, 0")
            e("s_add_u32 s27, s20, %d" % (blk * 64 * WC + kh * self.KH * 16 * self.ldw))
            for j in range(9):
                e("s_add_u32 m0, s23, %d" % (st * STG + j * 1024))
                e("s_nop 0")
                e("buffer_load_dwordx4 v%d, s[8:11], s27 offen lds" % (V_DMA + j))
                self.vm.append(('dma', st))
        dma(0)
        if os.environ.get("P1") and not self.mute:
            e("s_waitcnt vmcnt(0)")
            stamp(self.k)
        e("s_mul_i32 s25, s35, %d" % (self.RB * self.lda))
        e("s_add_u32 s38, s25, s28")
        e("s_add_u32 s39, s38, %d" % self.lda)
        e("v_lshlrev_b32 v17, 4, v1")
        self.PA = int(os.environ.get("PA", "10")) * 2 // self.RB
        for ks in range(self.PA):
            self.a_load(ks)
        self.pro_dma = dma
        e("s_mov_b32 s19, %d" % (3 * STG))
        e("v_bfe_u32 v%d, v1, 2, 2" % (V_T + 2))
        e("v_lshlrev_b32 v%d, 6, v%d" % (V_LBASE, V_T + 2))
        e("v_lshl_add_u32 v%d, v18, %d, v%d" % (V_LBASE, 9 if WC == 1 else 10, V_LBASE))
        e("v_bfe_u32 v%d, v1, 4, 1" % (V_T + 2))
        e("v_lshl_add_u32 v%d, v%d, 5, v%d" % (V_LBASE, V_T + 2, V_LBASE))
        e("v_and_b32 v%d, 3, v1" % (V_T + 2))
        e("v_lshl_add_u32 v%d, v%d, 3, v%d" % (V_LBASE, V_T + 2, V_LBASE))
        if WC == 2:
            e("s_lshl_b32 s27, s36, 9")
            e("v_add_u32 v%d, s27, v%d" % (V_LBASE, V_LBASE))
        e("v_mov_b32 v%d, v%d" % (V_ADDR, V_LBASE))
        e("s_mov_b32 s18, 0")
        if self.ofrag and self.epi == 'f32':
            e("v_lshlrev_b32 v%d, 4, v1" % V_OUT)
            e("s_mul_i32 s21, s35, %d" % (self.RB * self.ldo))
            e("s_add_u32 s21, s21, s29")
            e("s_lshl_b32 s27, s36, 12")
            e("s_add_u32 s21, s21, s27")
            e("s_add_u32 s22, s21, %d" % self.ldo)
        elif self.ofrag:
            e("v_lshlrev_b32 v%d, 4, v19" % V_OUT)
            e("v_lshl_add_u32 v%d, v18, 10, v%d" % (V_OUT, V_OUT))
            e("s_mul_i32 s21, s35, %d" % (2 * self.ldo))
            e("s_add_u32 s21, s21, s29")
            e("s_lshl_b32 s27, s36, 11")
            e("s_add_u32 s21, s21, s27")
            e("s_add_u32 s22, s21, %d" % self.ldo)
        else:
            e("s_lshl_b32 s27, s35, 6")
            e("v_add_u32 v%d, s27, v19" % V_OUT)
            e("s_movk_i32 s27, %d" % self.ldo)
            e("v_mul_lo_u32 v%d, v%d, s27" % (V_OUT, V_OUT))
            e("v_lshl_add_u32 v%d, v18, %d, v%d" % (V_OUT, 4 if self.epi == 'f32' else 5, V_OUT))
            e("s_lshl_b32 s27, s36, %d" % (7 if self.epi == 'f32' else 6))
            e("s_add_u32 s21, s29, s27")
            e("s_add_u32 s22, s21, %d" % (32 * self.ldo))
        if self.bias:
            e("v_lshlrev_b32 v%d, 4, v18" % V_BADDR)
            e("s_lshl_b32 s27, s36, 7")
            e("s_add_u32 s27, s27, 0x%x" % LDS_BIAS)
            e("v_add_u32 v%d, s27, v%d" % (V_BADDR, V_BADDR))
            e("v_mov_b32 v%d, 0xc0135761" % V_C1)
            e("s_mov_b32 s24, 0xbdd2d3e8")
        self.wait_vm(('dma', 0))
        if self.bias:
            e("v_lshlrev_b32 v%d, 16, v%d" % (V_T + 1, V_T + 1))
            e("v_lshlrev_b32 v%d, 2, v0" % V_T)
            e("v_add_u32 v%d, 0x%x, v%d" % (V_T, LDS_BIAS, V_T))
            e("ds_write_b32 v%d, v%d" % (V_T, V_T + 1))
            e("v_lshlrev_b32 v%d, 16, v%d" % (V_T + 3, V_T + 3))
            e("ds_write_b32 v%d, v%d offset:1024" % (V_T, V_T + 3))
            e("s_waitcnt lgkmcnt(0)")
        e("s_barrier")
        for ks in range(self.PD):
            self.frag_read(0, ks)


def gen_g1(WC=2, hfrag=False):
    k = K("g1_kernel")
    lend = k.newlabel("end")
    k("s_cmp_ge_u32 s2, 256")
    k("s_cbranch_scc1 %s" % lend)
    k.load_ptr(P_WS, 40)
    k.load_ptr(IN_WQKV, 42)
    k.load_ptr(IN_W1, 44)
    k.load_ptr(IN_B1, 46)
    if WC == 1:
        NQ, QB, QLAST, HB = 7, 8, 6, 6
        k("""
        s_and_b32 s35, s2, 7
        s_lshl_b32 s35, s35, 2
        s_lshr_b32 s36, s2, 6
        s_add_u32 s35, s35, s36
        s_bfe_u32 s36, s2, 0x30003
        s_cmp_eq_u32 s35, 31
        """)
        k("s_cbranch_scc1 %s" % lend)
        k("s_lshl_b32 s36, s36, 8")
    else:
        NQ, QB, QLAST, HB = 4, 7, 6, 6
        k("""
        s_and_b32 s35, s2, 7
        s_lshl_b32 s35, s35, 1
        s_lshr_b32 s36, s2, 7
        s_add_u32 s35, s35, s36
        s_bfe_u32 s36, s2, 0x40003
        s_lshl_b32 s36, s36, 7
        """)
    k("s_waitcnt lgkmcnt(0)")
    stamp_init(k, 40)
    k.srd(4, 40, S * D * 2, WS_XN)
    k("s_mul_i32 s28, s36, %d" % (D * 2))
    lh = k.newlabel("hpart")
    k("s_cmp_ge_u32 s35, %d" % NQ)
    k("s_cbranch_scc1 %s" % lh)
    k.srd(8, 42, D * 3 * D * 2)
    k("s_mov_b32 s16, s10")
    k.srd(12, 40, S * 3 * D * 2, WS_QKV)
    k("s_mul_i32 s20, s35, %d" % (QB * 64 * WC))
    k("s_cmp_eq_u32 s35, %d" % (NQ - 1))
    k("s_cselect_b32 s17, %d, %d" % (QLAST - 1, QB - 1))
    k("s_mul_i32 s29, s36, %d" % (3 * D * 2))
    k("s_add_u32 s29, s29, s20")
    e = Eng(k, WC, 'bf16', 36864, 3 * D * 2, 3 * D * 2)
    e.run("q")
    k("s_branch %s" % lend)
    k.label(lh)
    k.srd(8, 44, D * F * 2)
    k("s_mov_b32 s16, s10")
    k.srd(12, 40, S * F * 2, WS_H)
    k.srd(48, 46, F * 2)
    k("s_sub_u32 s35, s35, %d" % NQ)
    k("s_mul_i32 s20, s35, %d" % (HB * 64 * WC))
    k("s_mov_b32 s34, s20")
    k("s_mov_b32 s17, %d" % (HB - 1))
    k("s_mul_i32 s29, s36, %d" % (F * 2))
    if hfrag:
        k("s_lshl_b32 s37, s20, 5")
        k("s_add_u32 s29, s29, s37")
        e = Eng(k, WC, 'gelu', 36864, F * 2, 288 * 1024, bias=True, ofrag=True)
    else:
        k("s_add_u32 s29, s29, s20")
        e = Eng(k, WC, 'gelu', 36864, F * 2, F * 2, bias=True)
    e.run("h")
    k.label(lend)
    return k


def main():
    nsplit = 5
    kerns = []
    launches = []
    k, v = gen_ln(); kerns.append(k.text(v)); launches.append((k.name, 512, 0))
    k = gen_g1(int(os.environ.get('WC', '2'))); kerns.append(k.text(512, accum=256)); launches.append((k.name, 256, LDS_TOTAL))
    k, v = gen_attn(); kerns.append(k.text(v)); launches.append((k.name, 256, 0))
    k, v, acc, nwg = gen_gemm("g2_kernel", 'g2'); kerns.append(k.text(v, accum=acc)); launches.append((k.name, nwg, 2 * STAGE))
    k, v, acc, nwg = gen_gemm("g3_kernel", 'g3', nsplit); kerns.append(k.text(v, accum=acc)); launches.append((k.name, nwg, 2 * STAGE))
    k, v = gen_final(nsplit); kerns.append(k.text(v)); launches.append((k.name, S * D // 4 // 256, 0))
    out = []
    for (n, g, lds) in launches:
        out.append("; @launch kernel=%s grid=(%d,1,1) block=(256,1,1) lds=%d" % (n, g, lds))
    out.append('.amdgcn_target "amdgcn-amd-amdhsa--gfx950"')
    out.append(".text")
    for t, d in kerns:
        out.append(t)
    out.append('.section .rodata,"a"')
    for t, d in kerns:
        out.append(".p2align 6")
        out.append(d)
    fn = sys.argv[1] if len(sys.argv) > 1 else "cdna_kernels/%s.s" % NAME
    open(fn, "w").write("\n".join(out) + "\n")


if __name__ == "__main__":
    main()
```

```python
import sys, os
sys.path.insert(0, os.path.dirname(os.path.abspath(__file__)))
from gen2 import *

WS_WOT = 0x2800000
PART_STRIDE = 64 * 18 * 4096
NKC = int(os.environ.get('NKC', '4'))


class VM:
    def __init__(self, k):
        self.k = k
        self.q = []

    def issue(self, txt, tag):
        fx = os.environ.get("FINX", "")
        if (fx == "nop" and tag[0] == 'p') or (fx == "nog" and tag[0] in 'aw') or (fx == "now" and tag[0] == 'w') or (fx == "noa" and tag[0] == 'a'):
            return
        self.k(txt)
        self.q.append(tag)

    def wait(self, tag):
        idx = None
        for i in range(len(self.q) - 1, -1, -1):
            if self.q[i] == tag:
                idx = i
                break
        if idx is None:
            return
        n = len(self.q) - 1 - idx
        assert n <= 63
        self.k("s_waitcnt vmcnt(%d)" % n)
        self.q = self.q[idx + 1:]


def gen_ln2():
    k, v = gen_ln()
    assert k.lines[0].strip() == "s_cmp_ge_u32 s2, 512"
    lt = "wot_ln"
    k.lines[1] = "    s_cbranch_scc1 %s" % lt
    endl = k.lines.pop()
    k("s_endpgm")
    k.label(lt)
    k("s_cmp_ge_u32 s2, %d" % (512 + 162))
    k("s_cbranch_scc1 %s" % endl[:-1])
    k.load_ptr(IN_WO, 4)
    k.load_ptr(P_WS, 6)
    k("s_waitcnt lgkmcnt(0)")
    k.srd(8, 4, D * D * 2)
    k.srd(12, 6, D * D * 2, WS_WOT)
    k("""
    v_lshrrev_b32 v1, 6, v0
    s_nop 0
    v_readfirstlane_b32 s16, v1
    s_sub_u32 s17, s2, 512
    s_lshl_b32 s17, s17, 2
    s_add_u32 s16, s16, s17
    s_mul_i32 s17, s16, 1821
    s_lshr_b32 s17, s17, 16
    s_mul_i32 s18, s17, 36
    s_sub_u32 s18, s16, s18
    v_and_b32 v1, 63, v0
    v_lshrrev_b32 v2, 5, v1
    v_and_b32 v3, 31, v1
    v_mul_u32_u24 v2, 9216, v2
    v_lshl_add_u32 v2, v3, 1, v2
    s_mul_i32 s19, s18, 18432
    s_lshl_b32 s20, s17, 6
    s_add_u32 s19, s19, s20
    """)
    for e in range(8):
        if e == 3:
            k("s_add_u32 s19, s19, 3456")
        if e == 6:
            k("s_add_u32 s19, s19, 3456")
        k("buffer_load_ushort v%d, v2, s[8:11], s19 offen offset:%d" % (8 + e, (e % 3) * 1152))
    k("s_lshl_b32 s21, s16, 10")
    k("v_lshlrev_b32 v3, 4, v1")
    k("s_waitcnt vmcnt(0)")
    for j in range(4):
        k("v_lshl_or_b32 v%d, v%d, 16, v%d" % (4 + j, 9 + 2 * j, 8 + 2 * j))
    k("buffer_store_dwordx4 v[4:7], v3, s[12:15], s21 offen")
    k.lines.append(endl)
    return k, v, 512 + 162


def gen_attn_part(k):
    QR, KR, QF, TMP = 110, 70, 180, 52
    LG = 20
    OA = 70
    k.srd(8, 40, S * 3 * D * 2, WS_QKV)
    k.srd(12, 40, S * D * 2, WS_O)
    k("""
    v_and_b32 v3, 31, v0
    v_lshrrev_b32 v2, 6, v0
    v_lshlrev_b32 v2, 3, v2
    v_bfe_u32 v4, v0, 5, 1
    v_add_u32 v2, v2, v4
    s_lshl_b32 s16, s33, 5
    v_add_u32 v5, s16, v2
    v_mul_u32_u24 v4, 36, v3
    s_movk_i32 s17, 3456
    """)
    def ld9(dst, base, addr, off):
        k("buffer_load_dwordx4 %s[%d:%d], v%d, s[8:11], 0 offen offset:%d" % (dst, base, base + 3, addr, off))
        k("buffer_load_dwordx4 %s[%d:%d], v%d, s[8:11], 0 offen offset:%d" % (dst, base + 4, base + 7, addr, off + 16))
        k("buffer_load_dword %s%d, v%d, s[8:11], 0 offen offset:%d" % (dst, base + 8, addr, off + 32))
    for j in range(11):
        d = 2 * j - 14
        if d < 0:
            k("v_subrev_u32 v17, %d, v5" % (-d))
            k("v_max_i32 v17, 0, v17")
        else:
            k("v_add_u32 v17, %d, v5" % d)
        k("v_mul_lo_u32 v%d, v17, s17" % (6 + j))
        k("v_add_u32 v%d, v%d, v4" % (6 + j, 6 + j))
    for i in range(4):
        ld9("a", QR + 10 * i, 6 + 7 + i, 0)
    for j in range(11):
        ld9("v", KR + 10 * j, 6 + j, 1152)
    for j in range(11):
        ld9("a", 10 * j, 6 + j, 2304)
    k("s_waitcnt vmcnt(63)")
    k("s_waitcnt vmcnt(%d)" % 63)
    for i in range(4):
        for e in range(9):
            k("v_accvgpr_read_b32 v17, a%d" % (QR + 10 * i + e))
            k("v_lshlrev_b32 v%d, 16, v17" % (QF + 18 * i + 2 * e))
            k("v_and_b32 v%d, 0xffff0000, v17" % (QF + 18 * i + 2 * e + 1))
    for j in range(11):
        k("s_waitcnt vmcnt(%d)" % (33 + 3 * (10 - j)))
        for e in range(9):
            k("v_lshlrev_b32 v%d, 16, v%d" % (TMP + 2 * e, KR + 10 * j + e))
            k("v_and_b32 v%d, 0xffff0000, v%d" % (TMP + 2 * e + 1, KR + 10 * j + e))
        for i in range(4):
            w = 7 + i - j
            if not (0 <= w <= 7):
                continue
            lg = LG + 8 * i + w
            for d in range(18):
                if d == 0:
                    k("v_mul_f32 v%d, v%d, v%d" % (lg, QF + 18 * i, TMP))
                else:
                    k("v_fmac_f32 v%d, v%d, v%d" % (lg, QF + 18 * i + d, TMP + d))
    k("v_mov_b32 v19, 0xce6e0000")
    for i in range(4):
        L = LG + 8 * i
        for w in range(8):
            lg = L + w
            rne_bf16(k, lg, lg, 17)
            k("v_mul_f32 v%d, 0x3e715bef, v%d" % (lg, lg))
            rne_bf16(k, lg, lg, 17)
            if 2 * w - 2 * i > 0:
                k("v_cmp_gt_u32 vcc, %d, v5" % (2 * w - 2 * i))
                k("v_cndmask_b32 v%d, v%d, v19, vcc" % (lg, lg))
        k("v_max_f32 v17, v%d, v%d" % (L, L + 1))
        for w in range(2, 8):
            k("v_max_f32 v17, v17, v%d" % (L + w))
        for w in range(8):
            k("v_sub_f32 v%d, v%d, v17" % (L + w, L + w))
            k("v_mul_f32 v%d, 0x3fb8aa3b, v%d" % (L + w, L + w))
            k("v_exp_f32 v%d, v%d" % (L + w, L + w))
        k("s_nop 0")
        k("v_add_f32 v18, v%d, v%d" % (L, L + 1))
        for w in range(2, 8):
            k("v_add_f32 v18, v18, v%d" % (L + w))
        k("v_rcp_f32 v18, v18")
        k("s_nop 0")
        for w in range(8):
            k("v_mul_f32 v%d, v%d, v18" % (L + w, L + w))
            rne_bf16(k, L + w, L + w, 17)
    seen = set()
    for j in range(11):
        k("s_waitcnt vmcnt(%d)" % (3 * (10 - j)))
        for e in range(9):
            k("v_accvgpr_read_b32 v17, a%d" % (10 * j + e))
            k("v_lshlrev_b32 v%d, 16, v17" % (TMP + 2 * e))
            k("v_and_b32 v%d, 0xffff0000, v17" % (TMP + 2 * e + 1))
        for i in range(4):
            w = 7 + i - j
            if not (0 <= w <= 7):
                continue
            for d in range(18):
                if i not in seen:
                    k("v_mul_f32 v%d, v%d, v%d" % (OA + 18 * i + d, LG + 8 * i + w, TMP + d))
                else:
                    k("v_fmac_f32 v%d, v%d, v%d" % (OA + 18 * i + d, LG + 8 * i + w, TMP + d))
            seen.add(i)
    k("v_mul_u32_u24 v17, 1168, v2")
    k("v_add_u32 v17, v17, v4")
    for i in range(4):
        for e in range(9):
            k("v_cvt_pk_bf16_f32 v%d, v%d, v%d" % (TMP + e, OA + 18 * i + 2 * e, OA + 18 * i + 2 * e + 1))
        for e in range(9):
            k("ds_write_b32 v17, v%d offset:%d" % (TMP + e, 2 * i * 1168 + 4 * e))
    k("s_waitcnt lgkmcnt(0)")
    k("s_barrier")
    k("""
    v_lshrrev_b32 v6, 5, v0
    v_mul_u32_u24 v7, 1168, v3
    v_lshl_add_u32 v7, v6, 4, v7
    v_lshlrev_b32 v8, 4, v3
    v_lshl_add_u32 v8, v6, 9, v8
    s_mul_i32 s16, s33, 36864
    """)
    for j in range(9):
        k("ds_read_b128 v[%d:%d], v7 offset:%d" % (20 + 4 * j, 23 + 4 * j, 128 * j))
    for j in range(9):
        k("s_waitcnt lgkmcnt(%d)" % (8 - j))
        if j:
            k("s_add_u32 s16, s16, 4096")
        k("buffer_store_dwordx4 v[%d:%d], v8, s[12:15], s16 offen" % (20 + 4 * j, 23 + 4 * j))


def gen_g3():
    k = K("g3_kernel")
    lend = k.newlabel("end")
    latt = k.newlabel("att")
    k("s_cmp_ge_u32 s2, 256")
    k("s_cbranch_scc1 %s" % lend)
    k.load_ptr(P_WS, 40)
    k.load_ptr(IN_W2, 44)
    k("s_sub_u32 s33, s2, 192")
    if NKC == 8:
        k("""
        s_and_b32 s30, s2, 7
        s_bfe_u32 s31, s2, 0x30003
        s_lshr_b32 s32, s2, 6
        """)
        RB, MB = 2, 8
    else:
        k("""
        s_and_b32 s30, s2, 3
        s_bfe_u32 s31, s2, 0x30003
        s_bfe_u32 s32, s2, 0x10002
        s_lshl_b32 s32, s32, 3
        s_add_u32 s31, s31, s32
        s_lshr_b32 s32, s2, 6
        """)
        RB, MB = 1, 4
    k("s_waitcnt lgkmcnt(0)")
    stamp_init(k, 40)
    k("s_cmp_ge_u32 s2, 192")
    k("s_cbranch_scc1 %s" % latt)
    k.srd(4, 40, S * F * 2, WS_H)
    k("s_mul_i32 s28, s31, %d" % (MB * 288 * 1024))
    k("s_mul_i32 s37, s30, %d" % (36864 * 8 // NKC))
    k("s_add_u32 s28, s28, s37")
    k.srd(8, 44, F * D * 2)
    k("s_mov_b32 s16, s10")
    k("s_mul_i32 s20, s30, %d" % (576 * 1152 * 8 // NKC))
    k("s_mul_i32 s37, s32, %d" % (6 * 64))
    k("s_add_u32 s20, s20, s37")
    k.srd(12, 40, NKC * PART_STRIDE, WS_PART)
    k("s_mul_i32 s29, s30, %d" % PART_STRIDE)
    k("s_mul_i32 s37, s31, %d" % (MB * 18 * 4096))
    k("s_add_u32 s29, s29, s37")
    k("s_mul_i32 s37, s32, %d" % (6 * 4096))
    k("s_add_u32 s29, s29, s37")
    k("s_mov_b32 s17, 5")
    e = Eng(k, 1, 'f32', 288 * 1024, D * 2, 18 * 4096, ofrag=True, RB=RB)
    e.run("y")
    k("s_branch %s" % lend)
    k.label(latt)
    gen_attn_part(k)
    k.label(lend)
    return k


def gen_fin():
    k = K("fin_kernel")
    lend = k.newlabel("end")
    k("s_cmp_ge_u32 s2, 1152")
    k("s_cbranch_scc1 %s" % lend)
    k.load_ptr(P_WS, 40)
    k.load_ptr(IN_X, 42)
    k.load_ptr(IN_B2, 44)
    k.load_ptr(P_OUT, 46)
    NB = 16
    FA, FW, ACC, P, SM, XR, BR = 16, 80, 144, 160, 224, 240, 248
    k("""
    v_and_b32 v1, 63, v0
    s_and_b32 s30, s2, 7
    s_lshr_b32 s31, s2, 3
    s_mul_i32 s32, s31, 57
    s_lshr_b32 s32, s32, 10
    s_mul_i32 s33, s32, 18
    s_sub_u32 s33, s31, s33
    s_lshl_b32 s30, s30, 3
    s_add_u32 s30, s30, s32
    v_lshlrev_b32 v2, 4, v1
    v_lshrrev_b32 v3, 5, v1
    v_and_b32 v4, 31, v1
    """)
    k("s_waitcnt lgkmcnt(0)")
    k.srd(4, 40, S * D * 2, WS_O)
    k.srd(8, 40, D * D * 2, WS_WOT)
    k.srd(12, 40, NKC * PART_STRIDE, WS_PART)
    k.srd(16, 42, S * D * 2)
    k.srd(20, 44, D * 2)
    k.srd(48, 46, S * D * 2)
    k("s_mul_i32 s34, s30, 36864")
    k("s_mul_i32 s35, s33, 36864")
    k("s_mul_i32 s36, s30, %d" % (18 * 4096))
    k("s_lshl_b32 s37, s33, 12")
    k("s_add_u32 s36, s36, s37")
    vm = VM(k)
    soff = {}

    def ld_ab(ks):
        if ks % 4 == 0 and ks:
            k("s_add_u32 s34, s34, 4096")
            k("s_add_u32 s35, s35, 4096")
        sl = ks % NB
        vm.issue("buffer_load_dwordx4 v[%d:%d], v2, s[4:7], s34 offen offset:%d" % (FA + 4 * sl, FA + 4 * sl + 3, (ks % 4) * 1024), ('a', ks))
        vm.issue("buffer_load_dwordx4 v[%d:%d], v2, s[8:11], s35 offen offset:%d" % (FW + 4 * sl, FW + 4 * sl + 3, (ks % 4) * 1024), ('w', ks))

    def ld_p(sp):
        for g in range(4):
            r = P + 16 * (sp % 4) + 4 * g
            vm.issue("buffer_load_dwordx4 v[%d:%d], v2, s[12:15], s36 offen offset:%d" % (r, r + 3, g * 1024), ('p', sp))
        k("s_add_u32 s36, s36, %d" % PART_STRIDE)

    for ks in range(NB):
        ld_ab(ks)
    for sp in range(4):
        ld_p(sp)
    k("""
    s_lshl_b32 s38, s30, 5
    v_add_u32 v5, s38, v4
    s_movk_i32 s39, 1152
    v_mul_lo_u32 v5, v5, s39
    s_lshl_b32 s38, s33, 6
    v_lshlrev_b32 v6, 3, v3
    v_add_u32 v6, s38, v6
    v_add_u32 v7, v5, v6
    v_lshl_add_u32 v8, v3, 5, v5
    v_add_u32 v8, s38, v8
    """)
    for g in range(4):
        vm.issue("buffer_load_dwordx2 v[%d:%d], v7, s[16:19], 0 offen offset:%d" % (XR + 2 * g, XR + 2 * g + 1, 16 * g), 'x')
        vm.issue("buffer_load_dwordx2 v[%d:%d], v6, s[20:23], 0 offen offset:%d" % (BR + 2 * g, BR + 2 * g + 1, 16 * g), 'x')
    acc = "v[%d:%d]" % (ACC, ACC + 15)
    for ks in range(36):
        sl = ks % NB
        vm.wait(('w', ks))
        k("v_mfma_f32_32x32x16_bf16 %s, v[%d:%d], v[%d:%d], %s" % (acc, FW + 4 * sl, FW + 4 * sl + 3, FA + 4 * sl, FA + 4 * sl + 3, "0" if ks == 0 else acc))
        if ks + NB < 36:
            ld_ab(ks + NB)
        if ks == NB - 1:
            vm.wait(('p', 3))
            for r in range(16):
                k("v_add_f32 v%d, v%d, v%d" % (SM + r, P + r, P + 16 + r))
                k("v_add_f32 v%d, v%d, v%d" % (SM + r, SM + r, P + 32 + r))
                k("v_add_f32 v%d, v%d, v%d" % (SM + r, SM + r, P + 48 + r))
            for sp in range(4, NKC):
                ld_p(sp)
    if NKC == 8:
        vm.wait(('p', 7))
        for r in range(16):
            for sp in range(4):
                k("v_add_f32 v%d, v%d, v%d" % (SM + r, SM + r, P + 16 * sp + r))
    else:
        k("s_nop 15")
    T = 10
    OUTP = P
    pos = {0: 0, 2: 2, 1: 4, 3: 6}
    for g in range(4):
        for i in range(4):
            y = SM + 4 * g + i
            a = ACC + 4 * g + i
            rne_bf16(k, y, y, T)
            src = BR + 2 * g + i // 2
            k(("v_lshlrev_b32 v%d, 16, v%d" if i % 2 == 0 else "v_and_b32 v%d, 0xffff0000, v%d") % (T + 1, src))
            k("v_add_f32 v%d, v%d, v%d" % (y, y, T + 1))
            rne_bf16(k, y, y, T)
            k("v_mul_f32 v%d, 0xbfb8aa3b, v%d" % (T + 1, y))
            k("v_exp_f32 v%d, v%d" % (T + 1, T + 1))
            k("s_nop 0")
            k("v_add_f32 v%d, 1.0, v%d" % (T + 1, T + 1))
            k("v_rcp_f32 v%d, v%d" % (T + 1, T + 1))
            k("s_nop 0")
            k("v_mul_f32 v%d, v%d, v%d" % (y, y, T + 1))
            rne_bf16(k, y, y, T)
            rne_bf16(k, a, a, T)
            k("v_mul_f32 v%d, v%d, v%d" % (y, y, a))
            rne_bf16(k, y, y, T)
            src = XR + 2 * g + i // 2
            k(("v_lshlrev_b32 v%d, 16, v%d" if i % 2 == 0 else "v_and_b32 v%d, 0xffff0000, v%d") % (T + 1, src))
            k("v_add_f32 v%d, v%d, v%d" % (y, y, T + 1))
        k("v_cvt_pk_bf16_f32 v%d, v%d, v%d" % (OUTP + pos[g], SM + 4 * g, SM + 4 * g + 1))
        k("v_cvt_pk_bf16_f32 v%d, v%d, v%d" % (OUTP + pos[g] + 1, SM + 4 * g + 2, SM + 4 * g + 3))
    k("s_nop 1")
    for j in range(2):
        k("v_permlane32_swap_b32 v%d, v%d" % (OUTP + j, OUTP + 2 + j))
        k("v_permlane32_swap_b32 v%d, v%d" % (OUTP + 4 + j, OUTP + 6 + j))
    k("buffer_store_dwordx4 v[%d:%d], v8, s[48:51], 0 offen" % (OUTP, OUTP + 3))
    k("buffer_store_dwordx4 v[%d:%d], v8, s[48:51], 0 offen offset:16" % (OUTP + 4, OUTP + 7))
    k.label(lend)
    return k


def main():
    kerns = []
    launches = []
    k, v, n = gen_ln2(); kerns.append(k.text(v)); launches.append((k.name, n, 0))
    import gen2
    sk = os.environ.get('STAMPK', 'g3')
    gen2.STAMP = STAMP and sk == 'g1'
    k = gen_g1(int(os.environ.get('WC', '2')), hfrag=True); kerns.append(k.text(512, accum=256)); launches.append((k.name, 256, LDS_TOTAL))
    gen2.STAMP = STAMP and sk == 'g3'
    k = gen_g3(); kerns.append(k.text(512, accum=256)); launches.append((k.name, 256, LDS_TOTAL))
    k = gen_fin(); kerns.append(k.text(256, accum=256)); launches.append((k.name, 1152, 0, 64))
    out = []
    for L in launches:
        n, g, lds = L[:3]
        bs = L[3] if len(L) > 3 else 256
        out.append("; @launch kernel=%s grid=(%d,1,1) block=(%d,1,1) lds=%d" % (n, g, bs, lds))
    out.append('.amdgcn_target "amdgcn-amd-amdhsa--gfx950"')
    out.append(".text")
    for t, d in kerns:
        out.append(t)
    out.append('.section .rodata,"a"')
    for t, d in kerns:
        out.append(".p2align 6")
        out.append(d)
    fn = sys.argv[1] if len(sys.argv) > 1 else "v3.s"
    txt = "\n".join(out) + "\n"
    if not os.environ.get("NOSC1"):
        lines = txt.split("\n")
        mode = False
        for i, l in enumerate(lines):
            if l.startswith("hpart") or l.startswith("g3_kernel:") or l.startswith("ln_kernel:"):
                mode = True
            if l.startswith("fin_kernel:") or l.startswith("g1_kernel:"):
                mode = False
            if mode and "buffer_store" in l:
                lines[i] = l + " sc1"
        txt = "\n".join(lines)
    open(fn, "w").write(txt)


if __name__ == "__main__":
    main()
```

```python
import sys, os
sys.path.insert(0, os.path.dirname(os.path.abspath(__file__)))
from genlib import *

STG = 36 * 1024
NSLOT = 4
LDS_BIAS = NSLOT * STG
LDS_TOTAL = LDS_BIAS + 2048

V_ADDR = 2
V_DMA = 4
V_OUT = 13
V_BADDR = 14
V_C1 = 15
V_LBASE = 16
V_BIAS = 20
V_P = 36
V_T = 52
V_W = 128
NW = 8
V_ACC = 160
V_ASP = 224


STAMP = bool(os.environ.get("STAMP"))


def stamp_init(k, wsreg):
    if not STAMP:
        return
    k.srd(52, wsreg, 1 << 20, 0x8000000)
    k("v_lshrrev_b32 v60, 6, v0")
    k("s_nop 1")
    k("v_readfirstlane_b32 s62, v60")
    k("s_lshl_b32 s63, s2, 2")
    k("s_add_u32 s62, s62, s63")
    k("s_lshl_b32 s62, s62, 6")
    stamp(k)


def stamp(k):
    if not STAMP:
        return
    k("s_memtime s[60:61]")
    k("s_waitcnt lgkmcnt(0)")
    k("v_mov_b32 v60, s60")
    k("v_mov_b32 v61, s62")
    k("buffer_store_dword v60, v61, s[52:55], 0 offen")
    k("s_add_u32 s62, s62, 4")


class Eng:
    def __init__(self, k, WC, epi, lda, ldw, ldo, PD=5, bias=False, ofrag=False):
        self.k = k
        self.RB = 2
        self.WC = WC
        self.KS = 36
        self.KH = 36 // WC
        self.SPB = WC
        self.epi = epi
        self.lda, self.ldw, self.ldo = lda, ldw, ldo
        self.PD = PD
        self.KB = self.KH - PD - 2
        self.bias = bias
        self.ofrag = ofrag
        self.rec = {}
        self.mute = False
        self.reset()

    def reset(self):
        self.vm, self.lg = [], []
        self.stage_no, self.frag_no = 0, 0
        self.carry = []
        self.site, self.nsite = None, 0

    def e(self, s):
        if not self.mute:
            self.k(s)

    def afrag(self, f):
        if f < 64:
            return "a[%d:%d]" % (4 * f, 4 * f + 3)
        r = V_ASP + 4 * (f - 64)
        return "v[%d:%d]" % (r, r + 3)

    def _wait(self, lst, tag, kind, cap):
        idx = None
        for i in range(len(lst) - 1, -1, -1):
            if lst[i] == tag:
                idx = i
                break
        key = (self.site, self.nsite, kind)
        self.nsite += 1
        n = None if idx is None else min(len(lst) - 1 - idx, cap)
        if self.mute:
            if n is not None:
                self.rec[key] = min(self.rec.get(key, 99), n)
        else:
            n = self.rec.get(key, None)
        if n is None:
            return 0
        keep = lst[len(lst) - n:] if n > 0 else []
        del lst[:]
        lst.extend(keep)
        self.e("s_waitcnt %s(%d)" % (kind, n))
        return 4

    def wait_vm(self, tag):
        return self._wait(self.vm, tag, "vmcnt", 63)

    def wait_lg(self, tag):
        return self._wait(self.lg, tag, "lgkmcnt", 15)

    def epi_stream(self, par):
        it = []
        A = V_ACC + 32 * par
        t = [V_T + i for i in range(4)]
        u = [V_T + 4 + i for i in range(4)]
        p = [V_T + 8, V_T + 9]
        if self.epi == 'gelu':
            for g in range(4):
                it.append(("ds_read_b128 v[%d:%d], v%d offset:%d" % (V_BIAS + 4 * g, V_BIAS + 4 * g + 3, V_BADDR, g * 32), 4, 'lg', ('bias', g)))
            it.append(("v_add_u32 v%d, %d, v%d" % (V_BADDR, 128 * self.WC, V_BADDR), 4, None, None))
        for rb in range(self.RB):
            P = V_P + 8 * (rb & 1)
            pos = {0: 0, 2: 2, 1: 4, 3: 6}
            if self.epi == 'f32':
                for g in range(4):
                    a = A + 16 * rb + 4 * g
                    it.append(("buffer_store_dwordx4 v[%d:%d], v%d, s[12:15], s%d offen offset:%d" % (a, a + 3, V_OUT, 21 + rb, g * (1024 if self.ofrag else 32)), 8, 'vm', 'st'))
                continue
            for g in range(4):
                a = A + 16 * rb + 4 * g
                d0, d1 = P + pos[g], P + pos[g] + 1
                if self.epi == 'bf16':
                    it.append(("v_cvt_pk_bf16_f32 v%d, v%d, v%d" % (d0, a, a + 1), 4, None, None))
                    it.append(("v_cvt_pk_bf16_f32 v%d, v%d, v%d" % (d1, a + 2, a + 3), 4, None, None))
                    continue
                b = V_BIAS + 4 * g
                it.append(("v_cvt_pk_bf16_f32 v%d, v%d, v%d" % (p[0], a, a + 1), 4, None, None))
                it.append(("v_cvt_pk_bf16_f32 v%d, v%d, v%d" % (p[1], a + 2, a + 3), 4, None, None))
                def unpack():
                    it.append(("v_lshlrev_b32 v%d, 16, v%d" % (t[0], p[0]), 4, None, None))
                    it.append(("v_and_b32 v%d, 0xffff0000, v%d" % (t[1], p[0]), 4, None, None))
                    it.append(("v_lshlrev_b32 v%d, 16, v%d" % (t[2], p[1]), 4, None, None))
                    it.append(("v_and_b32 v%d, 0xffff0000, v%d" % (t[3], p[1]), 4, None, None))
                unpack()
                it.append((None, 0, 'waitlg', ('bias', g)))
                for i in range(4):
                    it.append(("v_add_f32 v%d, v%d, v%d" % (t[i], t[i], b + i), 4, None, None))
                it.append(("v_cvt_pk_bf16_f32 v%d, v%d, v%d" % (p[0], t[0], t[1]), 4, None, None))
                it.append(("v_cvt_pk_bf16_f32 v%d, v%d, v%d" % (p[1], t[2], t[3]), 4, None, None))
                unpack()
                for i in range(4):
                    it.append(("v_mul_f32 v%d, v%d, v%d" % (u[i], t[i], t[i]), 4, None, None))
                for i in range(4):
                    it.append(("v_fma_f32 v%d, v%d, s24, v%d" % (u[i], u[i], V_C1), 4, None, None))
                for i in range(4):
                    it.append(("v_mul_f32 v%d, v%d, v%d" % (u[i], u[i], t[i]), 4, None, None))
                for i in range(4):
                    it.append(("v_exp_f32 v%d, v%d" % (u[i], u[i]), 8, None, None))
                for i in range(4):
                    it.append(("v_add_f32 v%d, 1.0, v%d" % (u[i], u[i]), 4, None, None))
                for i in range(4):
                    it.append(("v_rcp_f32 v%d, v%d" % (u[i], u[i]), 8, None, None))
                for i in range(4):
                    it.append(("v_mul_f32 v%d, v%d, v%d" % (t[i], t[i], u[i]), 4, None, None))
                it.append(("v_cvt_pk_bf16_f32 v%d, v%d, v%d" % (d0, t[0], t[1]), 4, None, None))
                it.append(("v_cvt_pk_bf16_f32 v%d, v%d, v%d" % (d1, t[2], t[3]), 4, None, None))
            it.append(("s_nop 1", 4, None, None))
            for j in range(2):
                it.append(("v_permlane32_swap_b32 v%d, v%d" % (P + j, P + 2 + j), 4, None, None))
                it.append(("v_permlane32_swap_b32 v%d, v%d" % (P + 4 + j, P + 6 + j), 4, None, None))
            o2 = 512 if self.ofrag else 16
            it.append(("buffer_store_dwordx4 v[%d:%d], v%d, s[12:15], s%d offen" % (P, P + 3, V_OUT, 21 + rb), 8, 'vm', 'st'))
            it.append(("buffer_store_dwordx4 v[%d:%d], v%d, s[12:15], s%d offen offset:%d" % (P + 4, P + 7, V_OUT, 21 + rb, o2), 8, 'vm', 'st'))
        if self.epi == 'f32':
            step = (4096 if self.ofrag else 128) * self.WC
        else:
            step = (2048 if self.ofrag else 64) * self.WC
        it.append(("s_add_u32 s21, s21, %d" % step, 4, None, None))
        it.append(("s_add_u32 s22, s22, %d" % step, 4, None, None))
        return it

    def put(self, item):
        txt, cost, kind, tag = item
        if kind == 'waitlg':
            return self.wait_lg(tag)
        self.e(txt)
        if kind == 'lg':
            self.lg.append(tag)
        elif kind == 'vm':
            self.vm.append(tag)
        return cost

    def frag_read(self, q, ks):
        slot = self.frag_no % NW
        r = V_W + 4 * slot
        for h in range(2):
            self.e("ds_read_b64_tr_b16 v[%d:%d], v%d offset:%d" % (r + 2 * h, r + 2 * h + 1, V_ADDR + q, ks * 1024 * self.WC + h * 256))
            self.lg.append(('w', self.frag_no))
        self.frag_no += 1

    def stage_pos(self, st):
        return st // self.SPB, st % self.SPB

    def dma_setup(self, i):
        blk, kh = self.stage_pos(i + 3)
        self.e("s_cmp_ge_u32 s17, %d" % blk)
        self.e("s_cselect_b32 s10, s16, 0")
        self.e("s_add_u32 s25, s19, s23")
        self.e("s_add_u32 s27, s20, %d" % (blk * 64 * self.WC + kh * self.KH * 16 * self.ldw))
        self.e("s_add_u32 s19, s19, %d" % STG)
        self.e("s_cmp_eq_u32 s19, %d" % (NSLOT * STG))
        self.e("s_cselect_b32 s19, 0, s19")
        tag = ('dma', self.stage_no + 3)
        groups = []
        for j in range(0 if os.environ.get("NODMA") else 9):
            groups.append((j, tag))
            for d in range(self.DSP - 1):
                groups.append(None)
        return groups

    def dma_site(self, site):
        if site is None:
            return
        j, tag = site
        self.e("s_add_u32 m0, s25, %d" % (j * 1024))
        self.e("s_nop 0")
        self.e("buffer_load_dwordx4 v%d, s[8:11], s27 offen lds" % (V_DMA + j))
        self.vm.append(tag)

    def a_load(self, ks):
        e = self.e
        if ks % 4 == 0 and ks:
            e("s_add_u32 s38, s38, 4096")
            e("s_add_u32 s39, s39, 4096")
        for rb in range(2):
            e("buffer_load_dwordx4 %s, v17, s[4:7], s%d offen offset:%d" % (self.afrag(rb * self.KS + ks), 38 if rb == 0 else 39, (ks % 4) * 1024))
            self.vm.append(('a', ks, rb))

    def body(self, par, with_epi, first=False):
        self.site = (par, with_epi)
        self.nsite = 0
        RB, PD = self.RB, self.PD
        fill = self.epi_stream(1 - par) if with_epi else []
        total = sum(x[1] for x in fill)
        ngap = 72
        done = 0
        fi = 0
        gap = 0
        A = V_ACC + 32 * par
        for i in range(self.SPB):
            q = self.stage_no & 1
            for ks in range(self.KH):
                kglob = i * self.KH + ks
                fragno = self.frag_no - PD
                w = V_W + 4 * (fragno % NW)
                for rb in range(RB):
                    if rb == 0:
                        self.wait_lg(('w', fragno))
                    if first:
                        self.wait_vm(('a', kglob, rb))
                    acc = "v[%d:%d]" % (A + 16 * rb, A + 16 * rb + 15)
                    srcc = "0" if kglob == 0 else acc
                    self.e("v_mfma_f32_32x32x16_bf16 %s, v[%d:%d], %s, %s" % (acc, w, w + 3, self.afrag(rb * self.KS + kglob), srcc))
                    if first and rb == 1:
                        if kglob + self.PA < self.KS:
                            self.a_load(kglob + self.PA)
                        if kglob == self.D1:
                            self.pro_dma(1)
                        if kglob == self.D2:
                            self.pro_dma(2)
                    if rb == 0:
                        if ks == self.KB:
                            while self.carry:
                                self.dma_site(self.carry.pop(0))
                            self.wait_vm(('dma', self.stage_no + 1))
                            if not os.environ.get("NOBAR"):
                                self.e("s_barrier")
                            self.e("s_add_u32 s18, s18, %d" % STG)
                            self.e("s_cmp_eq_u32 s18, %d" % (NSLOT * STG))
                            self.e("s_cselect_b32 s18, 0, s18")
                            self.e("v_add_u32 v%d, s18, v%d" % (V_ADDR + (1 - q), V_LBASE))
                            self.carry = self.dma_setup(i)
                            self.carry_gap = 0
                        nk = ks + PD
                        if nk < self.KH:
                            self.frag_read(q, nk)
                        else:
                            self.frag_read(1 - q, nk - self.KH)
                    if self.carry and (rb == 1 or self.WC == 2) and not (rb == 0 and ks == self.KB):
                        self.dma_site(self.carry.pop(0))
                    gap += 1
                    if gap >= 3:
                        target = total * (gap - 2) / (ngap - 4)
                        while fi < len(fill) and (done < target):
                            self.put(fill[fi]); fi += 1
                            done += fill[fi - 1][1]
            self.stage_no += 1
        while fi < len(fill):
            self.put(fill[fi]); fi += 1
        self.e("s_add_u32 s20, s20, %d" % (64 * self.WC))

    def drain(self, par):
        self.e("s_nop 15")
        for item in self.epi_stream(par):
            txt, cost, kind, tag = item
            if kind == 'waitlg':
                self.e("s_waitcnt lgkmcnt(0)")
            else:
                self.e(txt)

    def run(self, tagname):
        k = self.k
        self.DSP = 4 if self.WC == 1 else 4
        self.D1 = int(os.environ.get("D1", "6" if self.WC == 1 else "0"))
        self.D2 = int(os.environ.get("D2", "16" if self.WC == 1 else "6"))
        self.mute = True
        for w in range(1):
            self.simw = w
            self.reset()
            self.prologue()
            self.body(0, False, True)
            for it in range(6):
                self.body(1, True)
                self.body(0, True)
        self.mute = False
        self.reset()
        l_loop = k.newlabel("loop" + tagname)
        l_d0 = k.newlabel("drain0" + tagname)
        l_d1 = k.newlabel("drain1" + tagname)
        l_end = k.newlabel("fin" + tagname)
        self.prologue()
        stamp(k)
        self.body(0, False, True)
        stamp(k)
        k("s_cmp_eq_u32 s17, 0")
        k("s_cbranch_scc1 %s" % l_d0)
        k("s_sub_u32 s17, s17, 1")
        k.label(l_loop)
        self.body(1, True)
        stamp(k)
        k("s_cmp_eq_u32 s17, 0")
        k("s_cbranch_scc1 %s" % l_d1)
        k("s_sub_u32 s17, s17, 1")
        self.body(0, True)
        stamp(k)
        k("s_cmp_eq_u32 s17, 0")
        k("s_cbranch_scc1 %s" % l_d0)
        k("s_sub_u32 s17, s17, 1")
        k("s_branch %s" % l_loop)
        k.label(l_d0)
        self.drain(0)
        k("s_branch %s" % l_end)
        k.label(l_d1)
        self.drain(1)
        k.label(l_end)
        if STAMP:
            k("s_waitcnt vmcnt(0)")
        stamp(k)

    def prologue(self):
        e = self.e
        WC = self.WC
        self.site, self.nsite = ('pro',), 0
        e("""
        v_lshrrev_b32 v17, 6, v0
        v_and_b32 v1, 63, v0
        v_readfirstlane_b32 s26, v17
        v_lshrrev_b32 v18, 5, v1
        v_and_b32 v19, 31, v1
        """)
        if WC == 2:
            e("s_lshr_b32 s35, s26, 1")
            e("s_and_b32 s36, s26, 1")
        else:
            e("s_mov_b32 s35, s26")
            e("s_mov_b32 s36, 0")
        if self.bias:
            e("v_lshlrev_b32 v%d, 1, v0" % V_T)
            e("buffer_load_ushort v%d, v%d, s[48:51], s34 offen" % (V_T + 1, V_T))
            e("buffer_load_ushort v%d, v%d, s[48:51], s34 offen offset:512" % (V_T + 3, V_T))
            self.vm.append('bias')
            self.vm.append('bias')
        e("s_mul_i32 s23, s26, %d" % (9 * 1024))
        e("s_movk_i32 s27, %d" % self.ldw)
        if WC == 1:
            e("s_mul_i32 s25, s26, %d" % (9 * 16))
            e("v_lshrrev_b32 v17, 2, v1")
            e("v_add_u32 v17, s25, v17")
            e("v_mul_lo_u32 v17, v17, s27")
            e("v_and_b32 v%d, 3, v1" % V_DMA)
            e("v_lshl_add_u32 v%d, v%d, 4, v17" % (V_DMA, V_DMA))
            rstep = 16
        else:
            e("s_mul_i32 s25, s26, %d" % (9 * 8))
            e("v_bfe_u32 v17, v1, 2, 3")
            e("v_add_u32 v17, s25, v17")
            e("v_mul_lo_u32 v17, v17, s27")
            e("v_lshl_add_u32 v17, v18, 6, v17")
            e("v_and_b32 v%d, 3, v1" % V_DMA)
            e("v_lshl_add_u32 v%d, v%d, 4, v17" % (V_DMA, V_DMA))
            rstep = 8
        for j in range(1, 9):
            e("v_add_u32 v%d, 0x%x, v%d" % (V_DMA + j, rstep * self.ldw, V_DMA + j - 1))

        def dma(st):
            blk, kh = self.stage_pos(st)
            e("s_cmp_ge_u32 s17, %d" % blk)
            e("s_cselect_b32 s10, s16, 0")
            e("s_add_u32 s27, s20, %d" % (blk * 64 * WC + kh * self.KH * 16 * self.ldw))
            for j in range(9):
                e("s_add_u32 m0, s23, %d" % (st * STG + j * 1024))
                e("s_nop 0")
                e("buffer_load_dwordx4 v%d, s[8:11], s27 offen lds" % (V_DMA + j))
                self.vm.append(('dma', st))
        dma(0)
        if os.environ.get("P1") and not self.mute:
            e("s_waitcnt vmcnt(0)")
            stamp(self.k)
        e("s_mul_i32 s25, s35, %d" % (2 * self.lda))
        e("s_add_u32 s38, s25, s28")
        e("s_add_u32 s39, s38, %d" % self.lda)
        e("v_lshlrev_b32 v17, 4, v1")
        self.PA = int(os.environ.get("PA", "10"))
        for ks in range(self.PA):
            self.a_load(ks)
        self.pro_dma = dma
        e("s_mov_b32 s19, %d" % (3 * STG))
        e("v_bfe_u32 v%d, v1, 2, 2" % (V_T + 2))
        e("v_lshlrev_b32 v%d, 6, v%d" % (V_LBASE, V_T + 2))
        e("v_lshl_add_u32 v%d, v18, %d, v%d" % (V_LBASE, 9 if WC == 1 else 10, V_LBASE))
        e("v_bfe_u32 v%d, v1, 4, 1" % (V_T + 2))
        e("v_lshl_add_u32 v%d, v%d, 5, v%d" % (V_LBASE, V_T + 2, V_LBASE))
        e("v_and_b32 v%d, 3, v1" % (V_T + 2))
        e("v_lshl_add_u32 v%d, v%d, 3, v%d" % (V_LBASE, V_T + 2, V_LBASE))
        if WC == 2:
            e("s_lshl_b32 s27, s36, 9")
            e("v_add_u32 v%d, s27, v%d" % (V_LBASE, V_LBASE))
        e("v_mov_b32 v%d, v%d" % (V_ADDR, V_LBASE))
        e("s_mov_b32 s18, 0")
        if self.ofrag and self.epi == 'f32':
            e("v_lshlrev_b32 v%d, 4, v1" % V_OUT)
            e("s_mul_i32 s21, s35, %d" % (2 * self.ldo))
            e("s_add_u32 s21, s21, s29")
            e("s_lshl_b32 s27, s36, 12")
            e("s_add_u32 s21, s21, s27")
            e("s_add_u32 s22, s21, %d" % self.ldo)
        elif self.ofrag:
            e("v_lshlrev_b32 v%d, 4, v19" % V_OUT)
            e("v_lshl_add_u32 v%d, v18, 10, v%d" % (V_OUT, V_OUT))
            e("s_mul_i32 s21, s35, %d" % (2 * self.ldo))
            e("s_add_u32 s21, s21, s29")
            e("s_lshl_b32 s27, s36, 11")
            e("s_add_u32 s21, s21, s27")
            e("s_add_u32 s22, s21, %d" % self.ldo)
        else:
            e("s_lshl_b32 s27, s35, 6")
            e("v_add_u32 v%d, s27, v19" % V_OUT)
            e("s_movk_i32 s27, %d" % self.ldo)
            e("v_mul_lo_u32 v%d, v%d, s27" % (V_OUT, V_OUT))
            e("v_lshl_add_u32 v%d, v18, %d, v%d" % (V_OUT, 4 if self.epi == 'f32' else 5, V_OUT))
            e("s_lshl_b32 s27, s36, %d" % (7 if self.epi == 'f32' else 6))
            e("s_add_u32 s21, s29, s27")
            e("s_add_u32 s22, s21, %d" % (32 * self.ldo))
        if self.bias:
            e("v_lshlrev_b32 v%d, 4, v18" % V_BADDR)
            e("s_lshl_b32 s27, s36, 7")
            e("s_add_u32 s27, s27, 0x%x" % LDS_BIAS)
            e("v_add_u32 v%d, s27, v%d" % (V_BADDR, V_BADDR))
            e("v_mov_b32 v%d, 0xc0135761" % V_C1)
            e("s_mov_b32 s24, 0xbdd2d3e8")
        self.wait_vm(('dma', 0))
        if self.bias:
            e("v_lshlrev_b32 v%d, 16, v%d" % (V_T + 1, V_T + 1))
            e("v_lshlrev_b32 v%d, 2, v0" % V_T)
            e("v_add_u32 v%d, 0x%x, v%d" % (V_T, LDS_BIAS, V_T))
            e("ds_write_b32 v%d, v%d" % (V_T, V_T + 1))
            e("v_lshlrev_b32 v%d, 16, v%d" % (V_T + 3, V_T + 3))
            e("ds_write_b32 v%d, v%d offset:1024" % (V_T, V_T + 3))
            e("s_waitcnt lgkmcnt(0)")
        e("s_barrier")
        for ks in range(self.PD):
            self.frag_read(0, ks)


def gen_g1(WC=2, hfrag=False):
    k = K("g1_kernel")
    lend = k.newlabel("end")
    k("s_cmp_ge_u32 s2, 256")
    k("s_cbranch_scc1 %s" % lend)
    k.load_ptr(P_WS, 40)
    k.load_ptr(IN_WQKV, 42)
    k.load_ptr(IN_W1, 44)
    k.load_ptr(IN_B1, 46)
    if WC == 1:
        NQ, QB, QLAST, HB = 7, 8, 6, 6
        k("""
        s_and_b32 s35, s2, 7
        s_lshl_b32 s35, s35, 2
        s_lshr_b32 s36, s2, 6
        s_add_u32 s35, s35, s36
        s_bfe_u32 s36, s2, 0x30003
        s_cmp_eq_u32 s35, 31
        """)
        k("s_cbranch_scc1 %s" % lend)
        k("s_lshl_b32 s36, s36, 8")
    else:
        NQ, QB, QLAST, HB = 4, 7, 6, 6
        k("""
        s_and_b32 s35, s2, 7
        s_lshl_b32 s35, s35, 1
        s_lshr_b32 s36, s2, 7
        s_add_u32 s35, s35, s36
        s_bfe_u32 s36, s2, 0x40003
        s_lshl_b32 s36, s36, 7
        """)
    k("s_waitcnt lgkmcnt(0)")
    stamp_init(k, 40)
    k.srd(4, 40, S * D * 2, WS_XN)
    k("s_mul_i32 s28, s36, %d" % (D * 2))
    lh = k.newlabel("hpart")
    k("s_cmp_ge_u32 s35, %d" % NQ)
    k("s_cbranch_scc1 %s" % lh)
    k.srd(8, 42, D * 3 * D * 2)
    k("s_mov_b32 s16, s10")
    k.srd(12, 40, S * 3 * D * 2, WS_QKV)
    k("s_mul_i32 s20, s35, %d" % (QB * 64 * WC))
    k("s_cmp_eq_u32 s35, %d" % (NQ - 1))
    k("s_cselect_b32 s17, %d, %d" % (QLAST - 1, QB - 1))
    k("s_mul_i32 s29, s36, %d" % (3 * D * 2))
    k("s_add_u32 s29, s29, s20")
    e = Eng(k, WC, 'bf16', 36864, 3 * D * 2, 3 * D * 2)
    e.run("q")
    k("s_branch %s" % lend)
    k.label(lh)
    k.srd(8, 44, D * F * 2)
    k("s_mov_b32 s16, s10")
    k.srd(12, 40, S * F * 2, WS_H)
    k.srd(48, 46, F * 2)
    k("s_sub_u32 s35, s35, %d" % NQ)
    k("s_mul_i32 s20, s35, %d" % (HB * 64 * WC))
    k("s_mov_b32 s34, s20")
    k("s_mov_b32 s17, %d" % (HB - 1))
    k("s_mul_i32 s29, s36, %d" % (F * 2))
    if hfrag:
        k("s_lshl_b32 s37, s20, 5")
        k("s_add_u32 s29, s29, s37")
        e = Eng(k, WC, 'gelu', 36864, F * 2, 288 * 1024, bias=True, ofrag=True)
    else:
        k("s_add_u32 s29, s29, s20")
        e = Eng(k, WC, 'gelu', 36864, F * 2, F * 2, bias=True)
    e.run("h")
    k.label(lend)
    return k


def main():
    nsplit = 5
    kerns = []
    launches = []
    k, v = gen_ln(); kerns.append(k.text(v)); launches.append((k.name, 512, 0))
    k = gen_g1(int(os.environ.get('WC', '2'))); kerns.append(k.text(512, accum=256)); launches.append((k.name, 256, LDS_TOTAL))
    k, v = gen_attn(); kerns.append(k.text(v)); launches.append((k.name, 256, 0))
    k, v, acc, nwg = gen_gemm("g2_kernel", 'g2'); kerns.append(k.text(v, accum=acc)); launches.append((k.name, nwg, 2 * STAGE))
    k, v, acc, nwg = gen_gemm("g3_kernel", 'g3', nsplit); kerns.append(k.text(v, accum=acc)); launches.append((k.name, nwg, 2 * STAGE))
    k, v = gen_final(nsplit); kerns.append(k.text(v)); launches.append((k.name, S * D // 4 // 256, 0))
    out = []
    for (n, g, lds) in launches:
        out.append("; @launch kernel=%s grid=(%d,1,1) block=(256,1,1) lds=%d" % (n, g, lds))
    out.append('.amdgcn_target "amdgcn-amd-amdhsa--gfx950"')
    out.append(".text")
    for t, d in kerns:
        out.append(t)
    out.append('.section .rodata,"a"')
    for t, d in kerns:
        out.append(".p2align 6")
        out.append(d)
    fn = sys.argv[1] if len(sys.argv) > 1 else "cdna_kernels/%s.s" % NAME
    open(fn, "w").write("\n".join(out) + "\n")


if __name__ == "__main__":
    main()
```

```python
import sys, os
sys.path.insert(0, os.path.dirname(os.path.abspath(__file__)))
from gen2 import *

WS_WOT = 0x2800000
PART_STRIDE = 64 * 18 * 4096
NKC = 8


class VM:
    def __init__(self, k):
        self.k = k
        self.q = []

    def issue(self, txt, tag):
        fx = os.environ.get("FINX", "")
        if (fx == "nop" and tag[0] == 'p') or (fx == "nog" and tag[0] in 'aw') or (fx == "now" and tag[0] == 'w') or (fx == "noa" and tag[0] == 'a'):
            return
        self.k(txt)
        self.q.append(tag)

    def wait(self, tag):
        idx = None
        for i in range(len(self.q) - 1, -1, -1):
            if self.q[i] == tag:
                idx = i
                break
        if idx is None:
            return
        n = len(self.q) - 1 - idx
        assert n <= 63
        self.k("s_waitcnt vmcnt(%d)" % n)
        self.q = self.q[idx + 1:]


def gen_ln2():
    k, v = gen_ln()
    assert k.lines[0].strip() == "s_cmp_ge_u32 s2, 512"
    lt = "wot_ln"
    k.lines[1] = "    s_cbranch_scc1 %s" % lt
    endl = k.lines.pop()
    k("s_endpgm")
    k.label(lt)
    k("s_cmp_ge_u32 s2, %d" % (512 + 162))
    k("s_cbranch_scc1 %s" % endl[:-1])
    k.load_ptr(IN_WO, 4)
    k.load_ptr(P_WS, 6)
    k("s_waitcnt lgkmcnt(0)")
    k.srd(8, 4, D * D * 2)
    k.srd(12, 6, D * D * 2, WS_WOT)
    k("""
    v_lshrrev_b32 v1, 6, v0
    s_nop 0
    v_readfirstlane_b32 s16, v1
    s_sub_u32 s17, s2, 512
    s_lshl_b32 s17, s17, 2
    s_add_u32 s16, s16, s17
    s_mul_i32 s17, s16, 1821
    s_lshr_b32 s17, s17, 16
    s_mul_i32 s18, s17, 36
    s_sub_u32 s18, s16, s18
    v_and_b32 v1, 63, v0
    v_lshrrev_b32 v2, 5, v1
    v_and_b32 v3, 31, v1
    v_mul_u32_u24 v2, 9216, v2
    v_lshl_add_u32 v2, v3, 1, v2
    s_mul_i32 s19, s18, 18432
    s_lshl_b32 s20, s17, 6
    s_add_u32 s19, s19, s20
    """)
    for e in range(8):
        if e == 3:
            k("s_add_u32 s19, s19, 3456")
        if e == 6:
            k("s_add_u32 s19, s19, 3456")
        k("buffer_load_ushort v%d, v2, s[8:11], s19 offen offset:%d" % (8 + e, (e % 3) * 1152))
    k("s_lshl_b32 s21, s16, 10")
    k("v_lshlrev_b32 v3, 4, v1")
    k("s_waitcnt vmcnt(0)")
    for j in range(4):
        k("v_lshl_or_b32 v%d, v%d, 16, v%d" % (4 + j, 9 + 2 * j, 8 + 2 * j))
    k("buffer_store_dwordx4 v[4:7], v3, s[12:15], s21 offen")
    k.lines.append(endl)
    return k, v, 512 + 162


def gen_attn_part(k):
    QR, KR, QF, TMP = 110, 70, 180, 52
    LG = 20
    OA = 70
    k.srd(8, 40, S * 3 * D * 2, WS_QKV)
    k.srd(12, 40, S * D * 2, WS_O)
    k("""
    v_and_b32 v3, 31, v0
    v_lshrrev_b32 v2, 6, v0
    v_lshlrev_b32 v2, 3, v2
    v_bfe_u32 v4, v0, 5, 1
    v_add_u32 v2, v2, v4
    s_lshl_b32 s16, s33, 5
    v_add_u32 v5, s16, v2
    v_mul_u32_u24 v4, 36, v3
    s_movk_i32 s17, 3456
    """)
    def ld9(dst, base, addr, off):
        k("buffer_load_dwordx4 %s[%d:%d], v%d, s[8:11], 0 offen offset:%d" % (dst, base, base + 3, addr, off))
        k("buffer_load_dwordx4 %s[%d:%d], v%d, s[8:11], 0 offen offset:%d" % (dst, base + 4, base + 7, addr, off + 16))
        k("buffer_load_dword %s%d, v%d, s[8:11], 0 offen offset:%d" % (dst, base + 8, addr, off + 32))
    for j in range(11):
        d = 2 * j - 14
        if d < 0:
            k("v_subrev_u32 v17, %d, v5" % (-d))
            k("v_max_i32 v17, 0, v17")
        else:
            k("v_add_u32 v17, %d, v5" % d)
        k("v_mul_lo_u32 v%d, v17, s17" % (6 + j))
        k("v_add_u32 v%d, v%d, v4" % (6 + j, 6 + j))
    for i in range(4):
        ld9("a", QR + 10 * i, 6 + 7 + i, 0)
    for j in range(11):
        ld9("v", KR + 10 * j, 6 + j, 1152)
    for j in range(11):
        ld9("a", 10 * j, 6 + j, 2304)
    k("s_waitcnt vmcnt(63)")
    k("s_waitcnt vmcnt(%d)" % 63)
    for i in range(4):
        for e in range(9):
            k("v_accvgpr_read_b32 v17, a%d" % (QR + 10 * i + e))
            k("v_lshlrev_b32 v%d, 16, v17" % (QF + 18 * i + 2 * e))
            k("v_and_b32 v%d, 0xffff0000, v17" % (QF + 18 * i + 2 * e + 1))
    for j in range(11):
        k("s_waitcnt vmcnt(%d)" % (33 + 3 * (10 - j)))
        for e in range(9):
            k("v_lshlrev_b32 v%d, 16, v%d" % (TMP + 2 * e, KR + 10 * j + e))
            k("v_and_b32 v%d, 0xffff0000, v%d" % (TMP + 2 * e + 1, KR + 10 * j + e))
        for i in range(4):
            w = 7 + i - j
            if not (0 <= w <= 7):
                continue
            lg = LG + 8 * i + w
            for d in range(18):
                if d == 0:
                    k("v_mul_f32 v%d, v%d, v%d" % (lg, QF + 18 * i, TMP))
                else:
                    k("v_fmac_f32 v%d, v%d, v%d" % (lg, QF + 18 * i + d, TMP + d))
    k("v_mov_b32 v19, 0xce6e0000")
    for i in range(4):
        L = LG + 8 * i
        for w in range(8):
            lg = L + w
            rne_bf16(k, lg, lg, 17)
            k("v_mul_f32 v%d, 0x3e715bef, v%d" % (lg, lg))
            rne_bf16(k, lg, lg, 17)
            if 2 * w - 2 * i > 0:
                k("v_cmp_gt_u32 vcc, %d, v5" % (2 * w - 2 * i))
                k("v_cndmask_b32 v%d, v%d, v19, vcc" % (lg, lg))
        k("v_max_f32 v17, v%d, v%d" % (L, L + 1))
        for w in range(2, 8):
            k("v_max_f32 v17, v17, v%d" % (L + w))
        for w in range(8):
            k("v_sub_f32 v%d, v%d, v17" % (L + w, L + w))
            k("v_mul_f32 v%d, 0x3fb8aa3b, v%d" % (L + w, L + w))
            k("v_exp_f32 v%d, v%d" % (L + w, L + w))
        k("s_nop 0")
        k("v_add_f32 v18, v%d, v%d" % (L, L + 1))
        for w in range(2, 8):
            k("v_add_f32 v18, v18, v%d" % (L + w))
        k("v_rcp_f32 v18, v18")
        k("s_nop 0")
        for w in range(8):
            k("v_mul_f32 v%d, v%d, v18" % (L + w, L + w))
            rne_bf16(k, L + w, L + w, 17)
    seen = set()
    for j in range(11):
        k("s_waitcnt vmcnt(%d)" % (3 * (10 - j)))
        for e in range(9):
            k("v_accvgpr_read_b32 v17, a%d" % (10 * j + e))
            k("v_lshlrev_b32 v%d, 16, v17" % (TMP + 2 * e))
            k("v_and_b32 v%d, 0xffff0000, v17" % (TMP + 2 * e + 1))
        for i in range(4):
            w = 7 + i - j
            if not (0 <= w <= 7):
                continue
            for d in range(18):
                if i not in seen:
                    k("v_mul_f32 v%d, v%d, v%d" % (OA + 18 * i + d, LG + 8 * i + w, TMP + d))
                else:
                    k("v_fmac_f32 v%d, v%d, v%d" % (OA + 18 * i + d, LG + 8 * i + w, TMP + d))
            seen.add(i)
    k("v_mul_u32_u24 v17, 1168, v2")
    k("v_add_u32 v17, v17, v4")
    for i in range(4):
        for e in range(9):
            k("v_cvt_pk_bf16_f32 v%d, v%d, v%d" % (TMP + e, OA + 18 * i + 2 * e, OA + 18 * i + 2 * e + 1))
        for e in range(9):
            k("ds_write_b32 v17, v%d offset:%d" % (TMP + e, 2 * i * 1168 + 4 * e))
    k("s_waitcnt lgkmcnt(0)")
    k("s_barrier")
    k("""
    v_lshrrev_b32 v6, 5, v0
    v_mul_u32_u24 v7, 1168, v3
    v_lshl_add_u32 v7, v6, 4, v7
    v_lshlrev_b32 v8, 4, v3
    v_lshl_add_u32 v8, v6, 9, v8
    s_mul_i32 s16, s33, 36864
    """)
    for j in range(9):
        k("ds_read_b128 v[%d:%d], v7 offset:%d" % (20 + 4 * j, 23 + 4 * j, 128 * j))
    for j in range(9):
        k("s_waitcnt lgkmcnt(%d)" % (8 - j))
        if j:
            k("s_add_u32 s16, s16, 4096")
        k("buffer_store_dwordx4 v[%d:%d], v8, s[12:15], s16 offen" % (20 + 4 * j, 23 + 4 * j))


def gen_g3():
    k = K("g3_kernel")
    lend = k.newlabel("end")
    latt = k.newlabel("att")
    k("s_cmp_ge_u32 s2, 256")
    k("s_cbranch_scc1 %s" % lend)
    k.load_ptr(P_WS, 40)
    k.load_ptr(IN_W2, 44)
    k("s_sub_u32 s33, s2, 192")
    k("""
    s_and_b32 s30, s2, 7
    s_bfe_u32 s31, s2, 0x30003
    s_lshr_b32 s32, s2, 6
    """)
    k("s_waitcnt lgkmcnt(0)")
    stamp_init(k, 40)
    k("s_cmp_ge_u32 s2, 192")
    k("s_cbranch_scc1 %s" % latt)
    k.srd(4, 40, S * F * 2, WS_H)
    k("s_mul_i32 s28, s31, %d" % (8 * 288 * 1024))
    k("s_mul_i32 s37, s30, 36864")
    k("s_add_u32 s28, s28, s37")
    k.srd(8, 44, F * D * 2)
    k("s_mov_b32 s16, s10")
    k("s_mul_i32 s20, s30, %d" % (576 * 1152))
    k("s_mul_i32 s37, s32, %d" % (6 * 64))
    k("s_add_u32 s20, s20, s37")
    k.srd(12, 40, NKC * PART_STRIDE, WS_PART)
    k("s_mul_i32 s29, s30, %d" % PART_STRIDE)
    k("s_mul_i32 s37, s31, %d" % (8 * 18 * 4096))
    k("s_add_u32 s29, s29, s37")
    k("s_mul_i32 s37, s32, %d" % (6 * 4096))
    k("s_add_u32 s29, s29, s37")
    k("s_mov_b32 s17, 5")
    e = Eng(k, 1, 'f32', 288 * 1024, D * 2, 18 * 4096, ofrag=True)
    e.run("y")
    k("s_branch %s" % lend)
    k.label(latt)
    gen_attn_part(k)
    k.label(lend)
    return k


def gen_fin():
    k = K("fin_kernel")
    lend = k.newlabel("end")
    k("s_cmp_ge_u32 s2, 1152")
    k("s_cbranch_scc1 %s" % lend)
    k.load_ptr(P_WS, 40)
    k.load_ptr(IN_X, 42)
    k.load_ptr(IN_B2, 44)
    k.load_ptr(P_OUT, 46)
    NB = 16
    FA, FW, ACC, P, SM, XR, BR = 16, 80, 144, 160, 224, 240, 248
    k("""
    v_and_b32 v1, 63, v0
    s_and_b32 s30, s2, 7
    s_lshr_b32 s31, s2, 3
    s_mul_i32 s32, s31, 57
    s_lshr_b32 s32, s32, 10
    s_mul_i32 s33, s32, 18
    s_sub_u32 s33, s31, s33
    s_lshl_b32 s30, s30, 3
    s_add_u32 s30, s30, s32
    v_lshlrev_b32 v2, 4, v1
    v_lshrrev_b32 v3, 5, v1
    v_and_b32 v4, 31, v1
    """)
    k("s_waitcnt lgkmcnt(0)")
    k.srd(4, 40, S * D * 2, WS_O)
    k.srd(8, 40, D * D * 2, WS_WOT)
    k.srd(12, 40, NKC * PART_STRIDE, WS_PART)
    k.srd(16, 42, S * D * 2)
    k.srd(20, 44, D * 2)
    k.srd(48, 46, S * D * 2)
    k("s_mul_i32 s34, s30, 36864")
    k("s_mul_i32 s35, s33, 36864")
    k("s_mul_i32 s36, s30, %d" % (18 * 4096))
    k("s_lshl_b32 s37, s33, 12")
    k("s_add_u32 s36, s36, s37")
    vm = VM(k)
    soff = {}

    def ld_ab(ks):
        if ks % 4 == 0 and ks:
            k("s_add_u32 s34, s34, 4096")
            k("s_add_u32 s35, s35, 4096")
        sl = ks % NB
        vm.issue("buffer_load_dwordx4 v[%d:%d], v2, s[4:7], s34 offen offset:%d" % (FA + 4 * sl, FA + 4 * sl + 3, (ks % 4) * 1024), ('a', ks))
        vm.issue("buffer_load_dwordx4 v[%d:%d], v2, s[8:11], s35 offen offset:%d" % (FW + 4 * sl, FW + 4 * sl + 3, (ks % 4) * 1024), ('w', ks))

    def ld_p(sp):
        for g in range(4):
            r = P + 16 * (sp % 4) + 4 * g
            vm.issue("buffer_load_dwordx4 v[%d:%d], v2, s[12:15], s36 offen offset:%d" % (r, r + 3, g * 1024), ('p', sp))
        k("s_add_u32 s36, s36, %d" % PART_STRIDE)

    for ks in range(NB):
        ld_ab(ks)
    for sp in range(4):
        ld_p(sp)
    k("""
    s_lshl_b32 s38, s30, 5
    v_add_u32 v5, s38, v4
    s_movk_i32 s39, 1152
    v_mul_lo_u32 v5, v5, s39
    s_lshl_b32 s38, s33, 6
    v_lshlrev_b32 v6, 3, v3
    v_add_u32 v6, s38, v6
    v_add_u32 v7, v5, v6
    v_lshl_add_u32 v8, v3, 5, v5
    v_add_u32 v8, s38, v8
    """)
    for g in range(4):
        vm.issue("buffer_load_dwordx2 v[%d:%d], v7, s[16:19], 0 offen offset:%d" % (XR + 2 * g, XR + 2 * g + 1, 16 * g), 'x')
        vm.issue("buffer_load_dwordx2 v[%d:%d], v6, s[20:23], 0 offen offset:%d" % (BR + 2 * g, BR + 2 * g + 1, 16 * g), 'x')
    acc = "v[%d:%d]" % (ACC, ACC + 15)
    for ks in range(36):
        sl = ks % NB
        vm.wait(('w', ks))
        k("v_mfma_f32_32x32x16_bf16 %s, v[%d:%d], v[%d:%d], %s" % (acc, FW + 4 * sl, FW + 4 * sl + 3, FA + 4 * sl, FA + 4 * sl + 3, "0" if ks == 0 else acc))
        if ks + NB < 36:
            ld_ab(ks + NB)
        if ks == NB - 1:
            vm.wait(('p', 3))
            for r in range(16):
                k("v_add_f32 v%d, v%d, v%d" % (SM + r, P + r, P + 16 + r))
                k("v_add_f32 v%d, v%d, v%d" % (SM + r, SM + r, P + 32 + r))
                k("v_add_f32 v%d, v%d, v%d" % (SM + r, SM + r, P + 48 + r))
            for sp in range(4, 8):
                ld_p(sp)
    vm.wait(('p', 7))
    for r in range(16):
        for sp in range(4):
            k("v_add_f32 v%d, v%d, v%d" % (SM + r, SM + r, P + 16 * sp + r))
    T = 10
    OUTP = P
    pos = {0: 0, 2: 2, 1: 4, 3: 6}
    for g in range(4):
        for i in range(4):
            y = SM + 4 * g + i
            a = ACC + 4 * g + i
            rne_bf16(k, y, y, T)
            src = BR + 2 * g + i // 2
            k(("v_lshlrev_b32 v%d, 16, v%d" if i % 2 == 0 else "v_and_b32 v%d, 0xffff0000, v%d") % (T + 1, src))
            k("v_add_f32 v%d, v%d, v%d" % (y, y, T + 1))
            rne_bf16(k, y, y, T)
            k("v_mul_f32 v%d, 0xbfb8aa3b, v%d" % (T + 1, y))
            k("v_exp_f32 v%d, v%d" % (T + 1, T + 1))
            k("s_nop 0")
            k("v_add_f32 v%d, 1.0, v%d" % (T + 1, T + 1))
            k("v_rcp_f32 v%d, v%d" % (T + 1, T + 1))
            k("s_nop 0")
            k("v_mul_f32 v%d, v%d, v%d" % (y, y, T + 1))
            rne_bf16(k, y, y, T)
            rne_bf16(k, a, a, T)
            k("v_mul_f32 v%d, v%d, v%d" % (y, y, a))
            rne_bf16(k, y, y, T)
            src = XR + 2 * g + i // 2
            k(("v_lshlrev_b32 v%d, 16, v%d" if i % 2 == 0 else "v_and_b32 v%d, 0xffff0000, v%d") % (T + 1, src))
            k("v_add_f32 v%d, v%d, v%d" % (y, y, T + 1))
        k("v_cvt_pk_bf16_f32 v%d, v%d, v%d" % (OUTP + pos[g], SM + 4 * g, SM + 4 * g + 1))
        k("v_cvt_pk_bf16_f32 v%d, v%d, v%d" % (OUTP + pos[g] + 1, SM + 4 * g + 2, SM + 4 * g + 3))
    k("s_nop 1")
    for j in range(2):
        k("v_permlane32_swap_b32 v%d, v%d" % (OUTP + j, OUTP + 2 + j))
        k("v_permlane32_swap_b32 v%d, v%d" % (OUTP + 4 + j, OUTP + 6 + j))
    k("buffer_store_dwordx4 v[%d:%d], v8, s[48:51], 0 offen" % (OUTP, OUTP + 3))
    k("buffer_store_dwordx4 v[%d:%d], v8, s[48:51], 0 offen offset:16" % (OUTP + 4, OUTP + 7))
    k.label(lend)
    return k


def main():
    kerns = []
    launches = []
    k, v, n = gen_ln2(); kerns.append(k.text(v)); launches.append((k.name, n, 0))
    import gen2
    sk = os.environ.get('STAMPK', 'g3')
    gen2.STAMP = STAMP and sk == 'g1'
    k = gen_g1(int(os.environ.get('WC', '2')), hfrag=True); kerns.append(k.text(512, accum=256)); launches.append((k.name, 256, LDS_TOTAL))
    gen2.STAMP = STAMP and sk == 'g3'
    k = gen_g3(); kerns.append(k.text(512, accum=256)); launches.append((k.name, 256, LDS_TOTAL))
    k = gen_fin(); kerns.append(k.text(256, accum=256)); launches.append((k.name, 1152, 0, 64))
    out = []
    for L in launches:
        n, g, lds = L[:3]
        bs = L[3] if len(L) > 3 else 256
        out.append("; @launch kernel=%s grid=(%d,1,1) block=(%d,1,1) lds=%d" % (n, g, bs, lds))
    out.append('.amdgcn_target "amdgcn-amd-amdhsa--gfx950"')
    out.append(".text")
    for t, d in kerns:
        out.append(t)
    out.append('.section .rodata,"a"')
    for t, d in kerns:
        out.append(".p2align 6")
        out.append(d)
    fn = sys.argv[1] if len(sys.argv) > 1 else "v3.s"
    txt = "\n".join(out) + "\n"
    if not os.environ.get("NOSC1"):
        lines = txt.split("\n")
        mode = False
        for i, l in enumerate(lines):
            if l.startswith("hpart") or l.startswith("g3_kernel:"):
                mode = True
            if l.startswith("fin_kernel:"):
                mode = False
            if mode and "buffer_store" in l:
                lines[i] = l + " sc1"
        txt = "\n".join(lines)
    open(fn, "w").write(txt)


if __name__ == "__main__":
    main()
```

```python
import sys, os
sys.path.insert(0, os.path.dirname(os.path.abspath(__file__)))
from genlib import *

STG = 36 * 1024
NSLOT = 4
LDS_BIAS = NSLOT * STG
LDS_TOTAL = LDS_BIAS + 2048

V_ADDR = 2
V_DMA = 4
V_OUT = 13
V_BADDR = 14
V_C1 = 15
V_LBASE = 16
V_BIAS = 20
V_P = 36
V_T = 52
V_W = 128
NW = 8
V_ACC = 160
V_ASP = 224


STAMP = bool(os.environ.get("STAMP"))
WS_WQP = 0x2900000


def stamp_init(k, wsreg):
    if not STAMP:
        return
    k.srd(52, wsreg, 1 << 20, 0x8000000)
    k("v_lshrrev_b32 v60, 6, v0")
    k("s_nop 1")
    k("v_readfirstlane_b32 s62, v60")
    k("s_lshl_b32 s63, s2, 2")
    k("s_add_u32 s62, s62, s63")
    k("s_lshl_b32 s62, s62, 6")
    stamp(k)


def stamp(k):
    if not STAMP:
        return
    k("s_memrealtime s[60:61]" if os.environ.get("STAMPRT") else "s_memtime s[60:61]")
    k("s_waitcnt lgkmcnt(0)")
    k("v_mov_b32 v60, s60")
    k("v_mov_b32 v61, s62")
    k("buffer_store_dword v60, v61, s[52:55], 0 offen")
    k("s_add_u32 s62, s62, 4")


class Eng:
    def __init__(self, k, WC, epi, lda, ldw, ldo, PD=5, bias=False, ofrag=False, RB=2, CB=1):
        self.k = k
        self.RB = RB
        self.WC = WC
        self.CB = CB
        self.WL = WC * CB
        if CB == 2:
            PD = int(os.environ.get("PD2", "3"))
        self.KS = 72 // RB
        self.KH = 36 // self.WL
        self.SPB = self.KS // self.KH
        self.epi = epi
        self.lda, self.ldw, self.ldo = lda, ldw, ldo
        self.PD = PD
        self.KB = self.KH - PD - 2
        self.bias = bias
        self.ofrag = ofrag
        self.rec = {}
        self.extra = {}
        self.mute = False
        self.reset()

    def reset(self):
        self.vm, self.lg = [], []
        self.stage_no, self.frag_no = 0, 0
        self.carry = []
        self.site, self.nsite = None, 0

    def e(self, s):
        if not self.mute:
            self.k(s)

    def accb(self, par, ti):
        if self.CB * self.RB == 4:
            return (64, 160)[par] + 16 * ti
        return V_ACC + 32 * par + 16 * ti

    def afrag(self, f):
        if f < 64:
            return "a[%d:%d]" % (4 * f, 4 * f + 3)
        r = V_ASP + 4 * (f - 64)
        return "v[%d:%d]" % (r, r + 3)

    def _wait(self, lst, tag, kind, cap):
        idx = None
        for i in range(len(lst) - 1, -1, -1):
            if lst[i] == tag:
                idx = i
                break
        key = (self.site, self.nsite, kind)
        self.nsite += 1
        n = None if idx is None else min(len(lst) - 1 - idx, cap)
        if self.mute:
            if n is not None:
                self.rec[key] = min(self.rec.get(key, 99), n)
        else:
            n = self.rec.get(key, None)
        if n is None:
            return 0
        keep = lst[len(lst) - n:] if n > 0 else []
        del lst[:]
        lst.extend(keep)
        self.e("s_waitcnt %s(%d)" % (kind, n))
        return 4

    def wait_vm(self, tag):
        return self._wait(self.vm, tag, "vmcnt", 63)

    def wait_lg(self, tag):
        return self._wait(self.lg, tag, "lgkmcnt", 15)

    def epi_stream(self, par):
        it = []
        t = [V_T + i for i in range(4)]
        u = [V_T + 4 + i for i in range(4)]
        p = [V_T + 8, V_T + 9]
        CVT1 = not os.environ.get("NOCVT1")
        for cb in range(self.CB):
          if self.epi == 'gelu':
            for g in range(4):
                it.append(("ds_read_b128 v[%d:%d], v%d offset:%d" % (V_BIAS + 4 * g, V_BIAS + 4 * g + 3, V_BADDR, g * 32 + cb * 128), 4, 'lg', ('bias', cb, g)))
            if cb == self.CB - 1:
                it.append(("v_add_u32 v%d, %d, v%d" % (V_BADDR, 128 * self.WL, V_BADDR), 4, None, None))
          for rb in range(self.RB):
            ti = cb * self.RB + rb
            A = self.accb(par, ti)
            P = V_P + 8 * (ti & 1)
            pos = {0: 0, 2: 2, 1: 4, 3: 6}
            if self.epi == 'f32':
                for g in range(4):
                    a = A + 4 * g
                    it.append(("buffer_store_dwordx4 v[%d:%d], v%d, s[12:15], s%d offen offset:%d" % (a, a + 3, V_BADDR if cb else V_OUT, 21 + rb, g * (1024 if self.ofrag else 32)), 8, 'vm', 'st'))
                continue
            for g in range(4):
                a = A + 4 * g
                d0, d1 = P + pos[g], P + pos[g] + 1
                if self.epi == 'bf16':
                    it.append(("v_cvt_pk_bf16_f32 v%d, v%d, v%d" % (d0, a, a + 1), 4, None, None))
                    it.append(("v_cvt_pk_bf16_f32 v%d, v%d, v%d" % (d1, a + 2, a + 3), 4, None, None))
                    continue
                b = V_BIAS + 4 * g
                def unpack():
                    it.append(("v_lshlrev_b32 v%d, 16, v%d" % (t[0], p[0]), 4, None, None))
                    it.append(("v_and_b32 v%d, 0xffff0000, v%d" % (t[1], p[0]), 4, None, None))
                    it.append(("v_lshlrev_b32 v%d, 16, v%d" % (t[2], p[1]), 4, None, None))
                    it.append(("v_and_b32 v%d, 0xffff0000, v%d" % (t[3], p[1]), 4, None, None))
                if CVT1:
                    for i in range(4):
                        it.append(("v_cvt_pk_bf16_f32 v%d, 0, v%d" % (t[i], a + i), 4, None, None))
                else:
                    it.append(("v_cvt_pk_bf16_f32 v%d, v%d, v%d" % (p[0], a, a + 1), 4, None, None))
                    it.append(("v_cvt_pk_bf16_f32 v%d, v%d, v%d" % (p[1], a + 2, a + 3), 4, None, None))
                    unpack()
                it.append((None, 0, 'waitlg', ('bias', cb, g)))
                for i in range(4):
                    it.append(("v_add_f32 v%d, v%d, v%d" % (t[i], t[i], b + i), 4, None, None))
                if CVT1:
                    for i in range(4):
                        it.append(("v_cvt_pk_bf16_f32 v%d, 0, v%d" % (t[i], t[i]), 4, None, None))
                else:
                    it.append(("v_cvt_pk_bf16_f32 v%d, v%d, v%d" % (p[0], t[0], t[1]), 4, None, None))
                    it.append(("v_cvt_pk_bf16_f32 v%d, v%d, v%d" % (p[1], t[2], t[3]), 4, None, None))
                    unpack()
                for i in range(4):
                    it.append(("v_mul_f32 v%d, v%d, v%d" % (u[i], t[i], t[i]), 4, None, None))
                for i in range(4):
                    it.append(("v_fma_f32 v%d, v%d, s24, v%d" % (u[i], u[i], V_C1), 4, None, None))
                for i in range(4):
                    it.append(("v_mul_f32 v%d, v%d, v%d" % (u[i], u[i], t[i]), 4, None, None))
                for i in range(4):
                    it.append(("v_exp_f32 v%d, v%d" % (u[i], u[i]), 8, None, None))
                for i in range(4):
                    it.append(("v_add_f32 v%d, 1.0, v%d" % (u[i], u[i]), 4, None, None))
                for i in range(4):
                    it.append(("v_rcp_f32 v%d, v%d" % (u[i], u[i]), 8, None, None))
                for i in range(4):
                    it.append(("v_mul_f32 v%d, v%d, v%d" % (t[i], t[i], u[i]), 4, None, None))
                it.append(("v_cvt_pk_bf16_f32 v%d, v%d, v%d" % (d0, t[0], t[1]), 4, None, None))
                it.append(("v_cvt_pk_bf16_f32 v%d, v%d, v%d" % (d1, t[2], t[3]), 4, None, None))
            it.append(("s_nop 1", 4, None, None))
            for j in range(2):
                it.append(("v_permlane32_swap_b32 v%d, v%d" % (P + j, P + 2 + j), 4, None, None))
                it.append(("v_permlane32_swap_b32 v%d, v%d" % (P + 4 + j, P + 6 + j), 4, None, None))
            o2 = 512 if self.ofrag else 16
            o1 = cb * (2048 if self.ofrag else 64)
            it.append(("buffer_store_dwordx4 v[%d:%d], v%d, s[12:15], s%d offen offset:%d" % (P, P + 3, V_OUT, 21 + rb, o1), 8, 'vm', 'st'))
            it.append(("buffer_store_dwordx4 v[%d:%d], v%d, s[12:15], s%d offen offset:%d" % (P + 4, P + 7, V_OUT, 21 + rb, o1 + o2), 8, 'vm', 'st'))
        if self.epi == 'f32':
            step = (4096 if self.ofrag else 128) * self.WL
        else:
            step = (2048 if self.ofrag else 64) * self.WL
        it.append(("s_add_u32 s21, s21, %d" % step, 4, None, None))
        it.append(("s_add_u32 s22, s22, %d" % step, 4, None, None))
        return it

    def put(self, item):
        txt, cost, kind, tag = item
        if kind == 'waitlg':
            return self.wait_lg(tag)
        self.e(txt)
        if kind == 'lg':
            self.lg.append(tag)
        elif kind == 'vm':
            self.vm.append(tag)
        return cost

    def frag_read(self, q, ks, cb=0):
        slot = self.frag_no % NW
        r = V_W + 4 * slot
        for h in range(2):
            self.e("ds_read_b64_tr_b16 v[%d:%d], v%d offset:%d" % (r + 2 * h, r + 2 * h + 1, V_ADDR + q, ks * 1024 * self.WL + h * 256 + cb * 512))
            self.lg.append(('w', self.frag_no))
        self.frag_no += 1

    def stage_pos(self, st):
        return st // self.SPB, st % self.SPB

    def dma_setup(self, i):
        blk, kh = self.stage_pos(i + 3)
        self.e("s_cmp_ge_u32 s17, %d" % blk)
        self.e("s_cselect_b32 s10, s16, 0")
        self.e("s_add_u32 s25, s19, s23")
        self.e("s_add_u32 s27, s20, %d" % (blk * 64 * self.WL + kh * self.KH * 16 * self.ldw))
        self.e("s_add_u32 s19, s19, %d" % STG)
        self.e("s_cmp_eq_u32 s19, %d" % (NSLOT * STG))
        self.e("s_cselect_b32 s19, 0, s19")
        tag = ('dma', self.stage_no + 3)
        groups = []
        for j in range(0 if os.environ.get("NODMA") else 9):
            groups.append((j, tag))
            for d in range(self.DSP - 1):
                groups.append(None)
        return groups

    def dma_site(self, site):
        if site is None:
            return
        j, tag = site
        self.e("s_add_u32 m0, s25, %d" % (j * 1024))
        self.e("s_nop 0")
        self.e("buffer_load_dwordx4 v%d, s[8:11], s27 offen lds" % (V_DMA + j))
        self.vm.append(tag)

    def a_load(self, ks):
        e = self.e
        if ks % 4 == 0 and ks:
            e("s_add_u32 s38, s38, 4096")
            e("s_add_u32 s39, s39, 4096")
        for rb in range(self.RB):
            e("buffer_load_dwordx4 %s, v17, s[4:7], s%d offen offset:%d" % (self.afrag(rb * self.KS + ks), 38 if rb == 0 else 39, (ks % 4) * 1024))
            self.vm.append(('a', ks, rb))

    def body(self, par, with_epi, first=False):
        self.site = (par, with_epi)
        self.nsite = 0
        RB, PD, CB = self.RB, self.PD, self.CB
        fill = self.epi_stream(1 - par) if with_epi else []
        total = sum(x[1] for x in fill)
        ngap = 72 * CB
        done = 0
        fi = 0
        gap = 0
        for i in range(self.SPB):
            q = self.stage_no & 1
            for ks in range(self.KH):
              kglob = i * self.KH + ks
              for cb in range(CB):
                fragno = self.frag_no - PD * CB
                w = V_W + 4 * (fragno % NW)
                for rb in range(RB):
                    if rb == 0:
                        self.wait_lg(('w', fragno))
                    if first and cb == 0:
                        self.wait_vm(('a', kglob, rb))
                    a0 = self.accb(par, cb * RB + rb)
                    acc = "v[%d:%d]" % (a0, a0 + 15)
                    srcc = "0" if kglob == 0 else acc
                    self.e("v_mfma_f32_32x32x16_bf16 %s, v[%d:%d], %s, %s" % (acc, w, w + 3, self.afrag(rb * self.KS + kglob), srcc))
                    if first and rb == RB - 1 and cb == 0:
                        if kglob + self.PA < self.KS:
                            self.a_load(kglob + self.PA)
                        if kglob == self.D1:
                            self.pro_dma(1)
                        if kglob == self.D2:
                            self.pro_dma(2)
                        for x in self.extra.get(kglob, []):
                            self.e(x)
                            self.vm.append('pf')
                    isbar = (rb == 0 and cb == 0 and ks == self.KB)
                    if rb == 0:
                        if isbar:
                            while self.carry:
                                self.dma_site(self.carry.pop(0))
                            self.wait_vm(('dma', self.stage_no + 1))
                            if not os.environ.get("NOBAR"):
                                self.e("s_barrier")
                            self.e("s_add_u32 s18, s18, %d" % STG)
                            self.e("s_cmp_eq_u32 s18, %d" % (NSLOT * STG))
                            self.e("s_cselect_b32 s18, 0, s18")
                            self.e("v_add_u32 v%d, s18, v%d" % (V_ADDR + (1 - q), V_LBASE))
                            self.carry = self.dma_setup(i)
                            self.carry_gap = 0
                        nk = ks + PD
                        if nk < self.KH:
                            self.frag_read(q, nk, cb)
                        else:
                            self.frag_read(1 - q, nk - self.KH, cb)
                    if self.carry and (rb == 1 or self.WL == 2 or RB == 1) and not isbar:
                        self.dma_site(self.carry.pop(0))
                    gap += 1
                    if gap >= 3:
                        target = total * (gap - 2) / (ngap - 4)
                        while fi < len(fill) and (done < target):
                            self.put(fill[fi]); fi += 1
                            done += fill[fi - 1][1]
            self.stage_no += 1
        while fi < len(fill):
            self.put(fill[fi]); fi += 1
        self.e("s_add_u32 s20, s20, %d" % (64 * self.WL))

    def drain(self, par):
        self.e("s_nop 15")
        for item in self.epi_stream(par):
            txt, cost, kind, tag = item
            if kind == 'waitlg':
                self.e("s_waitcnt lgkmcnt(0)")
            else:
                self.e(txt)

    def run(self, tagname):
        k = self.k
        self.DSP = 4 if self.RB == 2 else int(os.environ.get("DSP1", "3"))
        self.D1 = int(os.environ.get("D1", "6" if self.WC == 1 else "0"))
        self.D2 = int(os.environ.get("D2", "16" if self.WC == 1 else "6"))
        if self.RB == 1:
            self.D1 = int(os.environ.get("D1R", "4"))
            self.D2 = int(os.environ.get("D2R", "20"))
        if self.CB == 2:
            self.DSP = int(os.environ.get("DSP2", "6")) if self.RB == 2 else int(os.environ.get("DSP21", "3"))
            self.D1 = int(os.environ.get("D1C", "0" if self.RB == 2 else "2"))
            self.D2 = int(os.environ.get("D2C", "6" if self.RB == 2 else "10"))
        self.mute = True
        for w in range(1):
            self.simw = w
            self.reset()
            self.prologue()
            self.body(0, False, True)
            for it in range(6):
                self.body(1, True)
                self.body(0, True)
        self.mute = False
        self.reset()
        l_loop = k.newlabel("loop" + tagname)
        l_d0 = k.newlabel("drain0" + tagname)
        l_d1 = k.newlabel("drain1" + tagname)
        l_end = k.newlabel("fin" + tagname)
        self.prologue()
        stamp(k)
        self.body(0, False, True)
        stamp(k)
        k("s_cmp_eq_u32 s17, 0")
        k("s_cbranch_scc1 %s" % l_d0)
        k("s_sub_u32 s17, s17, 1")
        k.label(l_loop)
        self.body(1, True)
        stamp(k)
        k("s_cmp_eq_u32 s17, 0")
        k("s_cbranch_scc1 %s" % l_d1)
        k("s_sub_u32 s17, s17, 1")
        self.body(0, True)
        stamp(k)
        k("s_cmp_eq_u32 s17, 0")
        k("s_cbranch_scc1 %s" % l_d0)
        k("s_sub_u32 s17, s17, 1")
        k("s_branch %s" % l_loop)
        k.label(l_d0)
        self.drain(0)
        k("s_branch %s" % l_end)
        k.label(l_d1)
        self.drain(1)
        k.label(l_end)
        if STAMP:
            k("s_waitcnt vmcnt(0)")
        stamp(k)

    def prologue(self):
        e = self.e
        WC = self.WC
        self.site, self.nsite = ('pro',), 0
        e("""
        v_lshrrev_b32 v17, 6, v0
        v_and_b32 v1, 63, v0
        v_readfirstlane_b32 s26, v17
        v_lshrrev_b32 v18, 5, v1
        v_and_b32 v19, 31, v1
        """)
        if WC == 2:
            e("s_lshr_b32 s35, s26, 1")
            e("s_and_b32 s36, s26, 1")
        else:
            e("s_mov_b32 s35, s26")
            e("s_mov_b32 s36, 0")
        if self.bias:
            e("v_lshlrev_b32 v%d, 1, v0" % V_T)
            e("buffer_load_ushort v%d, v%d, s[48:51], s34 offen" % (V_T + 1, V_T))
            e("buffer_load_ushort v%d, v%d, s[48:51], s34 offen offset:512" % (V_T + 3, V_T))
            self.vm.append('bias')
            self.vm.append('bias')
        e("s_mul_i32 s23, s26, %d" % (9 * 1024))
        e("s_movk_i32 s27, %d" % self.ldw)
        WL = self.WL
        if WL == 1:
            e("s_mul_i32 s25, s26, %d" % (9 * 16))
            e("v_lshrrev_b32 v17, 2, v1")
            e("v_add_u32 v17, s25, v17")
            e("v_mul_lo_u32 v17, v17, s27")
            e("v_and_b32 v%d, 3, v1" % V_DMA)
            e("v_lshl_add_u32 v%d, v%d, 4, v17" % (V_DMA, V_DMA))
            rstep = 16
        else:
            e("s_mul_i32 s25, s26, %d" % (9 * 8))
            e("v_bfe_u32 v17, v1, 2, 3")
            e("v_add_u32 v17, s25, v17")
            e("v_mul_lo_u32 v17, v17, s27")
            e("v_lshl_add_u32 v17, v18, 6, v17")
            e("v_and_b32 v%d, 3, v1" % V_DMA)
            e("v_lshl_add_u32 v%d, v%d, 4, v17" % (V_DMA, V_DMA))
            rstep = 8
        for j in range(1, 9):
            e("v_add_u32 v%d, 0x%x, v%d" % (V_DMA + j, rstep * self.ldw, V_DMA + j - 1))

        def dma(st):
            blk, kh = self.stage_pos(st)
            e("s_cmp_ge_u32 s17, %d" % blk)
            e("s_cselect_b32 s10, s16, 0")
            e("s_add_u32 s27, s20, %d" % (blk * 64 * WL + kh * self.KH * 16 * self.ldw))
            for j in range(9):
                e("s_add_u32 m0, s23, %d" % (st * STG + j * 1024))
                e("s_nop 0")
                e("buffer_load_dwordx4 v%d, s[8:11], s27 offen lds" % (V_DMA + j))
                self.vm.append(('dma', st))
        dma(0)
        if os.environ.get("P1") and not self.mute:
            e("s_waitcnt vmcnt(0)")
            stamp(self.k)
        e("s_mul_i32 s25, s35, %d" % (self.RB * self.lda))
        e("s_add_u32 s38, s25, s28")
        e("s_add_u32 s39, s38, %d" % self.lda)
        e("v_lshlrev_b32 v17, 4, v1")
        self.PA = int(os.environ.get("PA", "10")) * 2 // self.RB
        for ks in range(self.PA):
            self.a_load(ks)
        self.pro_dma = dma
        for x in self.extra.get(-1, []):
            e(x)
            self.vm.append('pf')
        e("s_mov_b32 s19, %d" % (3 * STG))
        e("v_bfe_u32 v%d, v1, 2, 2" % (V_T + 2))
        e("v_lshlrev_b32 v%d, 6, v%d" % (V_LBASE, V_T + 2))
        e("v_lshl_add_u32 v%d, v18, %d, v%d" % (V_LBASE, 9 if WL == 1 else 10, V_LBASE))
        e("v_bfe_u32 v%d, v1, 4, 1" % (V_T + 2))
        e("v_lshl_add_u32 v%d, v%d, 5, v%d" % (V_LBASE, V_T + 2, V_LBASE))
        e("v_and_b32 v%d, 3, v1" % (V_T + 2))
        e("v_lshl_add_u32 v%d, v%d, 3, v%d" % (V_LBASE, V_T + 2, V_LBASE))
        if WC == 2:
            e("s_lshl_b32 s27, s36, 9")
            e("v_add_u32 v%d, s27, v%d" % (V_LBASE, V_LBASE))
        e("v_mov_b32 v%d, v%d" % (V_ADDR, V_LBASE))
        e("s_mov_b32 s18, 0")
        if self.ofrag and self.epi == 'f32':
            e("v_lshlrev_b32 v%d, 4, v1" % V_OUT)
            if self.CB == 2:
                e("v_add_u32 v%d, 0x1000, v%d" % (V_BADDR, V_OUT))
            e("s_mul_i32 s21, s35, %d" % (self.RB * self.ldo))
            e("s_add_u32 s21, s21, s29")
            e("s_lshl_b32 s27, s36, 12")
            e("s_add_u32 s21, s21, s27")
            e("s_add_u32 s22, s21, %d" % self.ldo)
        elif self.ofrag:
            e("v_lshlrev_b32 v%d, 4, v19" % V_OUT)
            e("v_lshl_add_u32 v%d, v18, 10, v%d" % (V_OUT, V_OUT))
            e("s_mul_i32 s21, s35, %d" % (2 * self.ldo))
            e("s_add_u32 s21, s21, s29")
            e("s_lshl_b32 s27, s36, 11")
            e("s_add_u32 s21, s21, s27")
            e("s_add_u32 s22, s21, %d" % self.ldo)
        else:
            e("s_lshl_b32 s27, s35, 6")
            e("v_add_u32 v%d, s27, v19" % V_OUT)
            e("s_movk_i32 s27, %d" % self.ldo)
            e("v_mul_lo_u32 v%d, v%d, s27" % (V_OUT, V_OUT))
            e("v_lshl_add_u32 v%d, v18, %d, v%d" % (V_OUT, 4 if self.epi == 'f32' else 5, V_OUT))
            e("s_lshl_b32 s27, s36, %d" % (7 if self.epi == 'f32' else 6))
            e("s_add_u32 s21, s29, s27")
            e("s_add_u32 s22, s21, %d" % (32 * self.ldo))
        if self.bias:
            e("v_lshlrev_b32 v%d, 4, v18" % V_BADDR)
            e("s_lshl_b32 s27, s36, 7")
            e("s_add_u32 s27, s27, 0x%x" % LDS_BIAS)
            e("v_add_u32 v%d, s27, v%d" % (V_BADDR, V_BADDR))
            e("v_mov_b32 v%d, 0xc0135761" % V_C1)
            e("s_mov_b32 s24, 0xbdd2d3e8")
        self.wait_vm(('dma', 0))
        if self.bias:
            e("v_lshlrev_b32 v%d, 16, v%d" % (V_T + 1, V_T + 1))
            e("v_lshlrev_b32 v%d, 2, v0" % V_T)
            e("v_add_u32 v%d, 0x%x, v%d" % (V_T, LDS_BIAS, V_T))
            e("ds_write_b32 v%d, v%d" % (V_T, V_T + 1))
            e("v_lshlrev_b32 v%d, 16, v%d" % (V_T + 3, V_T + 3))
            e("ds_write_b32 v%d, v%d offset:1024" % (V_T, V_T + 3))
            e("s_waitcnt lgkmcnt(0)")
        e("s_barrier")
        for ks in range(self.PD):
            for cb in range(self.CB):
                self.frag_read(0, ks, cb)


def gen_g1(WC=2, hfrag=False):
    k = K("g1_kernel")
    lend = k.newlabel("end")
    k("s_cmp_ge_u32 s2, 256")
    k("s_cbranch_scc1 %s" % lend)
    k.load_ptr(P_WS, 40)
    k.load_ptr(IN_WQKV, 42)
    k.load_ptr(IN_W1, 44)
    k.load_ptr(IN_B1, 46)
    if WC == 1:
        NQ, QB, QLAST, HB = 7, 8, 6, 6
        k("""
        s_and_b32 s35, s2, 7
        s_lshl_b32 s35, s35, 2
        s_lshr_b32 s36, s2, 6
        s_add_u32 s35, s35, s36
        s_bfe_u32 s36, s2, 0x30003
        s_cmp_eq_u32 s35, 31
        """)
        k("s_cbranch_scc1 %s" % lend)
        k("s_lshl_b32 s36, s36, 8")
    else:
        NQ, QB, QLAST, HB = 4, 7, 6, 6
        NEWMAP = os.environ.get("G1MAP", "new") == "new"
        if NEWMAP:
            k("""
            s_and_b32 s37, s2, 7
            s_lshr_b32 s38, s2, 3
            s_mul_i32 s39, s37, 24
            s_add_u32 s39, s39, s38
            s_sub_u32 s39, s39, 8
            s_lshr_b32 s35, s39, 4
            s_add_u32 s35, s35, 4
            s_and_b32 s36, s39, 15
            s_lshr_b32 s39, s37, 1
            s_and_b32 s37, s37, 1
            s_lshl_b32 s37, s37, 3
            s_add_u32 s37, s37, s38
            s_cmp_lt_u32 s38, 8
            s_cselect_b32 s35, s39, s35
            s_cselect_b32 s36, s37, s36
            s_lshl_b32 s36, s36, 7
            """)
        else:
          k("""
        s_and_b32 s35, s2, 7
        s_lshl_b32 s35, s35, 1
        s_lshr_b32 s36, s2, 7
        s_add_u32 s35, s35, s36
        s_bfe_u32 s36, s2, 0x40003
        s_lshl_b32 s36, s36, 7
        """)
    k("s_waitcnt lgkmcnt(0)")
    stamp_init(k, 40)
    k.srd(4, 40, S * D * 2, WS_XN)
    k("s_mul_i32 s28, s36, %d" % (D * 2))
    lh = k.newlabel("hpart")
    k("s_cmp_ge_u32 s35, %d" % NQ)
    k("s_cbranch_scc1 %s" % lh)
    k.srd(8, 42, D * 3 * D * 2)
    k("s_mov_b32 s16, s10")
    k.srd(12, 40, S * 3 * D * 2, WS_QKV)
    k("s_mul_i32 s20, s35, %d" % (QB * 64 * WC))
    k("s_cmp_eq_u32 s35, %d" % (NQ - 1))
    k("s_cselect_b32 s17, %d, %d" % (QLAST - 1, QB - 1))
    k("s_mul_i32 s29, s36, %d" % (3 * D * 2))
    k("s_add_u32 s29, s29, s20")
    e = Eng(k, WC, 'bf16', 36864, 3 * D * 2, 3 * D * 2)
    e.run("q")
    if os.environ.get("PFW2", "g1") == "g1" and not os.environ.get("NOPF"):
        k.load_ptr(IN_W2, 44)
        if NEWMAP:
            k("s_mov_b32 s36, s2")
        else:
            k("s_lshr_b32 s36, s2, 3")
            k("s_and_b32 s37, s2, 1")
            k("s_lshl_b32 s36, s36, 1")
            k("s_add_u32 s36, s36, s37")
        k("s_mul_i32 s36, s36, %d" % (21 * 4096))
        k("v_lshlrev_b32 v17, 4, v0")
        k("s_waitcnt lgkmcnt(0)")
        k.srd(8, 44, D * F * 2)
        for j in range(21):
            k("buffer_load_dwordx4 v[20:23], v17, s[8:11], s36 offen")
            if j < 20:
                k("s_add_u32 s36, s36, 4096")
        k("s_waitcnt vmcnt(0)")
        stamp(k)
    k("s_branch %s" % lend)
    k.label(lh)
    k.srd(8, 44, D * F * 2)
    k("s_mov_b32 s16, s10")
    k.srd(12, 40, S * F * 2, WS_H)
    k.srd(48, 46, F * 2)
    k("s_sub_u32 s35, s35, %d" % NQ)
    k("s_mul_i32 s20, s35, %d" % (HB * 64 * WC))
    k("s_mov_b32 s34, s20")
    k("s_mov_b32 s17, %d" % (HB - 1))
    k("s_mul_i32 s29, s36, %d" % (F * 2))
    if hfrag:
        k("s_lshl_b32 s37, s20, 5")
        k("s_add_u32 s29, s29, s37")
        e = Eng(k, WC, 'gelu', 36864, F * 2, 288 * 1024, bias=True, ofrag=True)
    else:
        k("s_add_u32 s29, s29, s20")
        e = Eng(k, WC, 'gelu', 36864, F * 2, F * 2, bias=True)
    e.run("h")
    k.label(lend)
    return k


def gen_g1c():
    k = K("g1_kernel")
    lend = k.newlabel("end")
    k("s_cmp_ge_u32 s2, 256")
    k("s_cbranch_scc1 %s" % lend)
    k.load_ptr(P_WS, 40)
    k.load_ptr(IN_WQKV, 42)
    k.load_ptr(IN_W1, 44)
    k.load_ptr(IN_B1, 46)
    k.load_ptr(IN_W2, 68)
    k("""
    s_and_b32 s37, s2, 7
    s_lshr_b32 s38, s2, 6
    s_bfe_u32 s36, s2, 0x30003
    s_lshl_b32 s36, s36, 8
    """)
    k("s_waitcnt lgkmcnt(0)")
    stamp_init(k, 40)
    k.srd(4, 40, S * D * 2, WS_XN)
    k("s_mul_i32 s28, s36, %d" % (D * 2))
    TRICKLE = os.environ.get("PFW2", "g1") in ("tr", "tr2") and not os.environ.get("NOPF")
    TR2 = os.environ.get("PFW2", "g1") == "tr2"
    extra = {}
    if TRICKLE:
        k.srd(64, 68, D * F * 2)
        k("v_lshlrev_b32 v62, 7, v0")
        k("s_lshl_b32 s70, s2, 15")
        extra = {int(os.environ.get("PFK", "10")): ["buffer_load_dword v63, v62, s[64:67], s70 offen"]}
    def own_pf(ldw):
        if not TR2:
            return extra
        k("v_mul_u32_u24 v60, 911, v0")
        k("v_lshrrev_b32 v60, 16, v60")
        k("v_mul_u32_u24 v61, 72, v60")
        k("v_sub_u32 v61, v0, v61")
        k("s_movk_i32 s71, %d" % ldw)
        k("v_mul_lo_u32 v61, v61, s71")
        k("v_lshl_add_u32 v61, v60, 7, v61")
        k("s_mul_i32 s71, s36, %d" % (72 * ldw // 256))
        k("s_add_u32 s71, s71, s20")
        k("s_add_u32 s71, s71, 128")
        ex = dict(extra)
        kk = int(os.environ.get("PFK1", "-1"))
        ex[kk] = ["buffer_load_dword v63, v61, s[8:11], s71 offen"] + ex.get(kk, [])
        return ex
    lh = k.newlabel("hpart")
    lp = k.newlabel("pfpart")
    k("s_cmp_ge_u32 s38, 1")
    k("s_cbranch_scc1 %s" % lh)
    k("s_cmp_eq_u32 s37, 7")
    k("s_cbranch_scc1 %s" % lp)
    if os.environ.get('ATT2', '1') == '1':
        k.srd(8, 40, D * 3 * D * 2, WS_WQP)
    else:
        k.srd(8, 42, D * 3 * D * 2)
    k("s_mov_b32 s16, s10")
    k.srd(12, 40, S * 3 * D * 2, WS_QKV)
    k("s_mul_i32 s20, s37, %d" % (4 * 128))
    k("s_cmp_eq_u32 s37, 6")
    k("s_cselect_b32 s17, 2, 3")
    k("s_mul_i32 s29, s36, %d" % (3 * D * 2))
    k("s_add_u32 s29, s29, s20")
    e = Eng(k, 1, 'bf16', 36864, 3 * D * 2, 3 * D * 2, CB=2)
    e.extra = own_pf(3 * D * 2)
    e.run("q")
    k("s_branch %s" % lend)
    k.label(lp)
    if TRICKLE:
        k("buffer_load_dword v63, v62, s[64:67], s70 offen")
        k("s_waitcnt vmcnt(0)")
    if os.environ.get("PFW2", "g1") == "g1" and not os.environ.get("NOPF"):
        k.load_ptr(IN_W2, 44)
        k("s_lshr_b32 s36, s2, 3")
        k("s_mul_i32 s36, s36, %d" % (21 * 32768))
        k("v_lshlrev_b32 v17, 7, v0")
        k("s_waitcnt lgkmcnt(0)")
        k.srd(8, 44, D * F * 2)
        for j in range(21):
            k("buffer_load_dword v20, v17, s[8:11], s36 offen")
            if j < 20:
                k("s_add_u32 s36, s36, 32768")
            sl = int(os.environ.get("PFSLEEP", "0"))
            if sl:
                k("s_sleep %d" % sl)
        k("s_waitcnt vmcnt(0)")
        stamp(k)
    k("s_branch %s" % lend)
    k.label(lh)
    k.srd(8, 44, D * F * 2)
    k("s_mov_b32 s16, s10")
    k.srd(12, 40, S * F * 2, WS_H)
    k.srd(48, 46, F * 2)
    k("s_mul_i32 s35, s37, 3")
    k("s_add_u32 s35, s35, s38")
    k("s_sub_u32 s35, s35, 1")
    k("s_mul_i32 s20, s35, %d" % (3 * 128))
    k("s_mov_b32 s34, s20")
    k("s_mov_b32 s17, 2")
    k("s_mul_i32 s29, s36, %d" % (F * 2))
    k("s_lshl_b32 s37, s20, 5")
    k("s_add_u32 s29, s29, s37")
    e = Eng(k, 1, 'gelu', 36864, F * 2, 288 * 1024, bias=True, ofrag=True, CB=2)
    e.extra = own_pf(F * 2)
    e.run("h")
    k.label(lend)
    return k


def main():
    nsplit = 5
    kerns = []
    launches = []
    k, v = gen_ln(); kerns.append(k.text(v)); launches.append((k.name, 512, 0))
    k = gen_g1(int(os.environ.get('WC', '2'))); kerns.append(k.text(512, accum=256)); launches.append((k.name, 256, LDS_TOTAL))
    k, v = gen_attn(); kerns.append(k.text(v)); launches.append((k.name, 256, 0))
    k, v, acc, nwg = gen_gemm("g2_kernel", 'g2'); kerns.append(k.text(v, accum=acc)); launches.append((k.name, nwg, 2 * STAGE))
    k, v, acc, nwg = gen_gemm("g3_kernel", 'g3', nsplit); kerns.append(k.text(v, accum=acc)); launches.append((k.name, nwg, 2 * STAGE))
    k, v = gen_final(nsplit); kerns.append(k.text(v)); launches.append((k.name, S * D // 4 // 256, 0))
    out = []
    for (n, g, lds) in launches:
        out.append("; @launch kernel=%s grid=(%d,1,1) block=(256,1,1) lds=%d" % (n, g, lds))
    out.append('.amdgcn_target "amdgcn-amd-amdhsa--gfx950"')
    out.append(".text")
    for t, d in kerns:
        out.append(t)
    out.append('.section .rodata,"a"')
    for t, d in kerns:
        out.append(".p2align 6")
        out.append(d)
    fn = sys.argv[1] if len(sys.argv) > 1 else "cdna_kernels/%s.s" % NAME
    open(fn, "w").write("\n".join(out) + "\n")


if __name__ == "__main__":
    main()
```

```python
import sys, os
sys.path.insert(0, os.path.dirname(os.path.abspath(__file__)))
from gen2 import *

WS_WOT = 0x2800000
ATT2 = os.environ.get('ATT2', '1') == '1'
PART_STRIDE = 64 * 18 * 4096
NKC = int(os.environ.get('NKC', '4'))
G2A = os.environ.get('G2A', '1') == '1'
NBW = int(os.environ.get('NBW', '36' if ATT2 else '24'))


class VM:
    def __init__(self, k):
        self.k = k
        self.q = []

    def issue(self, txt, tag):
        fx = os.environ.get("FINX", "")
        if (fx == "nop" and tag[0] == 'p') or (fx == "nog" and tag[0] in 'aw') or (fx == "now" and tag[0] == 'w') or (fx == "noa" and tag[0] == 'a'):
            return
        self.k(txt)
        self.q.append(tag)

    def wait(self, tag):
        idx = None
        for i in range(len(self.q) - 1, -1, -1):
            if self.q[i] == tag:
                idx = i
                break
        if idx is None:
            return
        n = len(self.q) - 1 - idx
        assert n <= 63
        self.k("s_waitcnt vmcnt(%d)" % n)
        self.q = self.q[idx + 1:]


def gen_ln2():
    k, v = gen_ln()
    assert k.lines[0].strip() == "s_cmp_ge_u32 s2, 512"
    lt = "wot_ln"
    k.lines[1] = "    s_cbranch_scc1 %s" % lt
    endl = k.lines.pop()
    if not os.environ.get("NOPF"):
        i0 = k.lines.index("    s_load_dwordx2 s[6:7], s[0:1], 80")
        pre = K("tmp")
        pre.load_ptr(IN_WQKV, 24)
        pre.load_ptr(IN_W1, 26)
        pre.load_ptr(IN_W2, 28)
        pre.load_ptr(IN_B1, 30)
        pre.load_ptr(IN_B2, 32)
        k.lines[i0 + 1:i0 + 1] = pre.lines
        i1 = k.lines.index("    s_mov_b64 exec, s[20:21]")
        pre = K("tmp")
        pre.srd(36, 24, D * 3 * D * 2)
        pre.srd(40, 26, D * F * 2)
        pre.srd(44, 28, D * F * 2)
        pre.srd(48, 30, F * 2)
        pre.srd(52, 32, D * 2)
        PFS = int(os.environ.get("PFS", "0"))
        if os.environ.get("PFW2", "g1") == "tr2":
            pre("s_lshl_b32 s34, s2, 8")
            pre("v_add_u32 v44, s34, v0")
            pre("v_mul_u32_u24 v45, 384, v44")
            pre("v_lshrrev_b32 v46, 3, v44")
            pre("v_mul_u32_u24 v46, 3456, v46")
            pre("v_and_b32 v47, 7, v44")
            pre("v_lshl_add_u32 v46, v47, 9, v46")
            pre("v_lshlrev_b32 v44, 7, v44")
            pf = [(36, 46), (40, 45), (48, 44), (52, 44)]
            for sr, vo in pf:
                pre("buffer_load_dword v40, v%d, s[%d:%d], 0 offen" % (vo, sr, sr + 3))
        elif PFS == 0:
            pre("v_lshlrev_b32 v44, 4, v0")
            pre("s_lshl_b32 s34, s2, 12")
            pre("s_add_u32 s35, s34, 0x200000")
            pre("s_add_u32 s56, s34, 0x400000")
            pf = [(36, 34), (40, 34), (40, 35), (40, 56), (48, 34), (44, 34), (44, 35), (44, 56), (52, 34)]
            if os.environ.get("PFW2", "g1") != "ln":
                pf = [p for p in pf if p[0] != 44]
            for sr, so in pf:
                pre("buffer_load_dwordx4 v[40:43], v44, s[%d:%d], s%d offen" % (sr, sr + 3, so))
        else:
            sh = {64: 6, 128: 7}[PFS]
            pre("v_lshlrev_b32 v44, %d, v0" % sh)
            pre("s_lshl_b32 s34, s2, %d" % (8 + sh))
            pf = [(36, 34), (40, 34), (48, 34), (44, 34), (52, 34)]
            if os.environ.get("PFW2", "g1") != "ln":
                pf = [p for p in pf if p[0] != 44]
            if ATT2:
                pf = [p for p in pf if p[0] != 36]
            for sr, so in pf:
                pre("buffer_load_dword v40, v44, s[%d:%d], s%d offen" % (sr, sr + 3, so))
        k.lines[i1 + 1:i1 + 1] = pre.lines
        i2 = k.lines.index("    s_waitcnt vmcnt(0)")
        k.lines[i2] = "    s_waitcnt vmcnt(%d)" % len(pf)
        k("s_waitcnt vmcnt(0)")
        v = 48
    k("s_endpgm")
    k.label(lt)
    k("s_cmp_ge_u32 s2, %d" % (512 + 162))
    k("s_cbranch_scc1 %s" % ("wqp_ln" if ATT2 else endl[:-1]))
    k.load_ptr(IN_WO, 4)
    k.load_ptr(P_WS, 6)
    k("s_waitcnt lgkmcnt(0)")
    k.srd(8, 4, D * D * 2)
    k.srd(12, 6, D * D * 2, WS_WOT)
    k("""
    v_lshrrev_b32 v1, 6, v0
    s_nop 0
    v_readfirstlane_b32 s16, v1
    s_sub_u32 s17, s2, 512
    s_lshl_b32 s17, s17, 2
    s_add_u32 s16, s16, s17
    s_mul_i32 s17, s16, 1821
    s_lshr_b32 s17, s17, 16
    s_mul_i32 s18, s17, 36
    s_sub_u32 s18, s16, s18
    v_and_b32 v1, 63, v0
    v_lshrrev_b32 v2, 5, v1
    v_and_b32 v3, 31, v1
    v_mul_u32_u24 v2, 9216, v2
    v_lshl_add_u32 v2, v3, 1, v2
    s_mul_i32 s19, s18, 18432
    s_lshl_b32 s20, s17, 6
    s_add_u32 s19, s19, s20
    """)
    for e in range(8):
        if e == 3:
            k("s_add_u32 s19, s19, 3456")
        if e == 6:
            k("s_add_u32 s19, s19, 3456")
        k("buffer_load_ushort v%d, v2, s[8:11], s19 offen offset:%d" % (8 + e, (e % 3) * 1152))
    k("s_lshl_b32 s21, s16, 10")
    k("v_lshlrev_b32 v3, 4, v1")
    k("s_waitcnt vmcnt(0)")
    for j in range(4):
        k("v_lshl_or_b32 v%d, v%d, 16, v%d" % (4 + j, 9 + 2 * j, 8 + 2 * j))
    k("buffer_store_dwordx4 v[4:7], v3, s[12:15], s21 offen")
    if ATT2:
        k("s_endpgm")
        k.label("wqp_ln")
        k("s_cmp_ge_u32 s2, %d" % (512 + 162 + 144))
        k("s_cbranch_scc1 %s" % endl[:-1])
        k.load_ptr(IN_WQKV, 4)
        k.load_ptr(P_WS, 6)
        k("""
        v_lshrrev_b32 v1, 6, v0
        v_and_b32 v2, 31, v0
        v_readfirstlane_b32 s16, v1
        v_bfe_u32 v3, v0, 5, 1
        s_sub_u32 s17, s2, %d
        s_lshl_b32 s17, s17, 2
        s_add_u32 s16, s16, s17
        s_mul_i32 s16, s16, 3456
        v_mul_u32_u24 v4, 36, v2
        v_lshl_add_u32 v5, v3, 4, v4
        v_lshlrev_b32 v6, 4, v2
        v_lshl_add_u32 v6, v3, 9, v6
        v_mul_u32_u24 v7, 1152, v3
        v_add_u32 v8, v7, v4
        v_lshl_add_u32 v9, v2, 2, v7
        """ % (512 + 162))
        k("s_waitcnt lgkmcnt(0)")
        k.srd(8, 4, D * 3 * D * 2)
        k.srd(12, 6, D * 3 * D * 2, WS_WQP)
        for sec in range(3):
            k("buffer_load_dwordx4 v[%d:%d], v5, s[8:11], s16 offen offset:%d" % (12 + 4 * sec, 15 + 4 * sec, sec * 1152))
        k("buffer_load_dword v24, v8, s[8:11], s16 offen offset:32")
        k("buffer_load_dword v25, v4, s[8:11], s16 offen offset:%d" % (2304 + 32))
        for sec in range(3):
            k("s_waitcnt vmcnt(%d)" % (4 - sec + sec))
            k("buffer_store_dwordx4 v[%d:%d], v6, s[12:15], s16 offen offset:%d" % (12 + 4 * sec, 15 + 4 * sec, sec * 1152))
        k("s_waitcnt vmcnt(3)")
        k("v_lshlrev_b32 v10, 2, v2")
        k("buffer_store_dword v24, v9, s[12:15], s16 offen offset:1024")
        k("buffer_store_dword v25, v10, s[12:15], s16 offen offset:%d" % (2304 + 1024))
        k.lines.append(endl)
        return k, v, 512 + 162 + 144
    k.lines.append(endl)
    return k, v, 512 + 162


def gen_attn_part(k):
    if ATT2:
        OA, TMP, ld_w, XW, WR = gen_attn2(k)
    else:
        OA, TMP, ld_w, XW, WR = gen_attn1(k)
    gen_attn_tail(k, OA, TMP, ld_w, XW, WR)


def gen_attn2(k):
    QR, KR, TMP, PP = 62, 102, 212, 62
    LG = 20
    OA = 102
    k.srd(8, 40, S * 3 * D * 2, WS_QKV)
    k.srd(12, 40, S * D * 2, WS_O)
    k.srd(48, 40, D * D * 2, WS_WOT)
    k("""
    v_and_b32 v3, 31, v0
    v_lshrrev_b32 v2, 6, v0
    s_nop 0
    v_readfirstlane_b32 s35, v2
    v_lshlrev_b32 v2, 3, v2
    v_bfe_u32 v4, v0, 5, 1
    v_add_u32 v2, v2, v4
    s_lshl_b32 s16, s33, 5
    v_add_u32 v5, s16, v2
    v_lshlrev_b32 v18, 4, v3
    v_mul_u32_u24 v19, 12, v3
    s_movk_i32 s17, 3456
    s_mov_b32 s36, 0x05040100
    s_mov_b32 s37, 0x07060302
    """)
    AB = TMP
    def ld9(dst, base, j, off):
        k("buffer_load_dwordx4 %s[%d:%d], v%d, s[8:11], 0 offen offset:%d" % (dst, base, base + 3, 6 + j, off))
        k("buffer_load_dwordx4 %s[%d:%d], v%d, s[8:11], 0 offen offset:%d" % (dst, base + 4, base + 7, 6 + j, off + 512))
        k("buffer_load_dword %s%d, v%d, s[8:11], 0 offen offset:%d" % (dst, base + 8, AB + j, off + 1024))
    for j in range(11):
        d = 2 * j - 14
        if d < 0:
            k("v_subrev_u32 v17, %d, v5" % (-d))
            k("v_max_i32 v17, 0, v17")
        else:
            k("v_add_u32 v17, %d, v5" % d)
        k("v_mul_lo_u32 v%d, v17, s17" % (6 + j))
        k("v_add_u32 v%d, v%d, v18" % (6 + j, 6 + j))
        k("v_sub_u32 v%d, v%d, v19" % (AB + j, 6 + j))
    for i in range(4):
        ld9("v", QR + 10 * i, 7 + i, 0)
    for j in range(11):
        ld9("v", KR + 10 * j, j, 1152)
    for j in range(11):
        ld9("a", 10 * j, j, 2304)
    NPF = 3
    k("s_lshr_b32 s34, s33, 3")
    k("s_mul_i32 s34, s34, %d" % (NPF * 32768))
    k("v_lshlrev_b32 v17, 7, v0")
    for j in range(NPF):
        k("buffer_load_dword v250, v17, s[48:51], s34 offen")
        k("s_add_u32 s34, s34, 32768")
    WR = 256 - 4 * NBW
    assert WR >= 110
    def ld_w(f):
        if f % 4 == 0 and f:
            k("s_add_u32 s34, s34, %d" % (4096 + (110592 if f % 36 == 0 else 0)))
        r = WR + 4 * (f % NBW)
        k("buffer_load_dwordx4 a[%d:%d], v1, s[48:51], s34 offen offset:%d" % (r, r + 3, (f % 4) * 1024))
    k("v_and_b32 v1, 63, v0")
    k("v_lshlrev_b32 v1, 4, v1")
    k("s_mul_i32 s34, s35, 36864")
    for j in range(11):
        k("s_waitcnt vmcnt(%d)" % min(63, NPF + 33 + 3 * (10 - j)))
        if j == 0:
            stamp(k)
        for e in range(9):
            for i in range(4):
                w = 7 + i - j
                if not (0 <= w <= 7):
                    continue
                lg = LG + 8 * i + w
                k("v_dot2_f32_bf16 v%d, v%d, v%d, %s" % (lg, QR + 10 * i + e, KR + 10 * j + e, "0" if e == 0 else "v%d" % lg))
    for f in range(NBW):
        ld_w(f)
    XW = NBW + NPF
    stamp(k)
    for r in range(32):
        k("v_cvt_pk_bf16_f32 v%d, 0, v%d" % (LG + r, LG + r))
    for r in range(32):
        k("v_mul_f32 v%d, 0x3e715bef, v%d" % (LG + r, LG + r))
    for r in range(32):
        k("v_cvt_pk_bf16_f32 v%d, 0, v%d" % (LG + r, LG + r))
    lnm = k.newlabel("nomask")
    k("s_cmp_lg_u32 s33, 0")
    k("s_cbranch_scc1 %s" % lnm)
    k("v_mov_b32 v19, 0xce6e0000")
    for i in range(4):
        for w in range(8):
            if 2 * w - 2 * i > 0:
                k("v_cmp_gt_u32 vcc, %d, v5" % (2 * w - 2 * i))
                k("v_cndmask_b32 v%d, v%d, v19, vcc" % (LG + 8 * i + w, LG + 8 * i + w))
    k.label(lnm)
    M = TMP
    for i in range(4):
        L = LG + 8 * i
        k("v_max3_f32 v%d, v%d, v%d, v%d" % (M + i, L, L + 1, L + 2))
    for i in range(4):
        L = LG + 8 * i
        k("v_max3_f32 v%d, v%d, v%d, v%d" % (M + i, M + i, L + 3, L + 4))
    for i in range(4):
        L = LG + 8 * i
        k("v_max3_f32 v%d, v%d, v%d, v%d" % (M + i, M + i, L + 5, L + 6))
    for i in range(4):
        L = LG + 8 * i
        k("v_max_f32 v%d, v%d, v%d" % (M + i, M + i, L + 7))
    for r in range(32):
        k("v_sub_f32 v%d, v%d, v%d" % (LG + r, LG + r, M + r // 8))
    for r in range(32):
        k("v_mul_f32 v%d, 0x3fb8aa3b, v%d" % (LG + r, LG + r))
    for r in range(32):
        k("v_exp_f32 v%d, v%d" % (LG + r, LG + r))
    for i in range(4):
        k("v_add_f32 v%d, v%d, v%d" % (M + i, LG + 8 * i, LG + 8 * i + 1))
    for w in range(2, 8):
        for i in range(4):
            k("v_add_f32 v%d, v%d, v%d" % (M + i, M + i, LG + 8 * i + w))
    for i in range(4):
        k("v_rcp_f32 v%d, v%d" % (M + i, M + i))
    k("s_nop 0")
    for r in range(32):
        k("v_mul_f32 v%d, v%d, v%d" % (LG + r, LG + r, M + r // 8))
    pk = {}
    n = 0
    for i in range(4):
        for m in range(6):
            wl, wh = 7 + i - 2 * m, 7 + i - (2 * m + 1)
            okl, okh = 0 <= wl <= 7, (0 <= wh <= 7 and m < 5)
            if not (okl or okh):
                continue
            sl = "v%d" % (LG + 8 * i + wl) if okl else "0"
            sh = "v%d" % (LG + 8 * i + wh) if okh else "0"
            k("v_cvt_pk_bf16_f32 v%d, %s, %s" % (PP + n, sl, sh))
            pk[(i, m)] = PP + n
            n += 1
            if m == 5:
                k("v_cvt_pk_bf16_f32 v%d, 0, %s" % (PP + n, sl))
                pk[(i, m, 'hi')] = PP + n
                n += 1
    stamp(k)
    seen = set()
    for m in range(6):
        j = min(2 * m + 1, 10)
        k("s_waitcnt vmcnt(%d)" % min(63, XW + 3 * (10 - j)))
        for e in range(9):
            t = TMP + 4 * (e & 1)
            k("v_accvgpr_read_b32 v%d, a%d" % (t, 10 * (2 * m) + e))
            if m < 5:
                k("v_accvgpr_read_b32 v%d, a%d" % (t + 1, 10 * (2 * m + 1) + e))
                k("v_perm_b32 v%d, v%d, v%d, s36" % (t + 2, t + 1, t))
                k("v_perm_b32 v%d, v%d, v%d, s37" % (t + 3, t + 1, t))
            for i in range(4):
                if (i, m) not in pk:
                    continue
                for hh in range(2):
                    o = OA + 18 * i + 2 * e + hh
                    if m < 5:
                        src, p = t + 2 + hh, pk[(i, m)]
                    else:
                        src, p = t, (pk[(i, m)] if hh == 0 else pk[(i, m, 'hi')])
                    k("v_dot2_f32_bf16 v%d, v%d, v%d, %s" % (o, src, p, "v%d" % o if i in seen else "0"))
        for i in range(4):
            if (i, m) in pk:
                seen.add(i)
    k("s_nop 2")
    k("v_mul_u32_u24 v4, 36, v3")
    return OA, TMP, ld_w, XW, WR


def gen_attn1(k):
    QR, KR, QF, TMP = 110, 70, 180, 52
    LG = 20
    OA = 70
    k.srd(8, 40, S * 3 * D * 2, WS_QKV)
    k.srd(12, 40, S * D * 2, WS_O)
    k("""
    v_and_b32 v3, 31, v0
    v_lshrrev_b32 v2, 6, v0
    v_lshlrev_b32 v2, 3, v2
    v_bfe_u32 v4, v0, 5, 1
    v_add_u32 v2, v2, v4
    s_lshl_b32 s16, s33, 5
    v_add_u32 v5, s16, v2
    v_mul_u32_u24 v4, 36, v3
    s_movk_i32 s17, 3456
    """)
    def ld9(dst, base, addr, off):
        k("buffer_load_dwordx4 %s[%d:%d], v%d, s[8:11], 0 offen offset:%d" % (dst, base, base + 3, addr, off))
        k("buffer_load_dwordx4 %s[%d:%d], v%d, s[8:11], 0 offen offset:%d" % (dst, base + 4, base + 7, addr, off + 16))
        k("buffer_load_dword %s%d, v%d, s[8:11], 0 offen offset:%d" % (dst, base + 8, addr, off + 32))
    for j in range(11):
        d = 2 * j - 14
        if d < 0:
            k("v_subrev_u32 v17, %d, v5" % (-d))
            k("v_max_i32 v17, 0, v17")
        else:
            k("v_add_u32 v17, %d, v5" % d)
        k("v_mul_lo_u32 v%d, v17, s17" % (6 + j))
        k("v_add_u32 v%d, v%d, v4" % (6 + j, 6 + j))
    for i in range(4):
        ld9("a", QR + 10 * i, 6 + 7 + i, 0)
    for j in range(11):
        ld9("v", KR + 10 * j, 6 + j, 1152)
    for j in range(11):
        ld9("a", 10 * j, 6 + j, 2304)
    XW = 0
    WR = 256 - 4 * NBW
    def ld_w(f):
        if f % 4 == 0 and f:
            k("s_add_u32 s34, s34, %d" % (4096 + (110592 if f % 36 == 0 else 0)))
        r = WR + 4 * (f % NBW)
        k("buffer_load_dwordx4 a[%d:%d], v1, s[48:51], s34 offen offset:%d" % (r, r + 3, (f % 4) * 1024))
    if G2A:
        k.srd(48, 40, D * D * 2, WS_WOT)
        k("v_lshrrev_b32 v17, 6, v0")
        k("v_and_b32 v1, 63, v0")
        k("v_readfirstlane_b32 s35, v17")
        k("v_lshlrev_b32 v1, 4, v1")
        k("s_mul_i32 s34, s35, 36864")
        for f in range(NBW):
            ld_w(f)
        XW = NBW
    k("s_waitcnt vmcnt(63)")
    k("s_waitcnt vmcnt(%d)" % 63)
    stamp(k)
    for i in range(4):
        for e in range(9):
            k("v_accvgpr_read_b32 v17, a%d" % (QR + 10 * i + e))
            k("v_lshlrev_b32 v%d, 16, v17" % (QF + 18 * i + 2 * e))
            k("v_and_b32 v%d, 0xffff0000, v17" % (QF + 18 * i + 2 * e + 1))
    for j in range(11):
        k("s_waitcnt vmcnt(%d)" % min(63, XW + 33 + 3 * (10 - j)))
        for e in range(9):
            k("v_lshlrev_b32 v%d, 16, v%d" % (TMP + 2 * e, KR + 10 * j + e))
            k("v_and_b32 v%d, 0xffff0000, v%d" % (TMP + 2 * e + 1, KR + 10 * j + e))
        for i in range(4):
            w = 7 + i - j
            if not (0 <= w <= 7):
                continue
            lg = LG + 8 * i + w
            for d in range(18):
                if d == 0:
                    k("v_mul_f32 v%d, v%d, v%d" % (lg, QF + 18 * i, TMP))
                else:
                    k("v_fmac_f32 v%d, v%d, v%d" % (lg, QF + 18 * i + d, TMP + d))
    stamp(k)
    k("v_mov_b32 v19, 0xce6e0000")
    for i in range(4):
        L = LG + 8 * i
        for w in range(8):
            lg = L + w
            rne_bf16(k, lg, lg, 17)
            k("v_mul_f32 v%d, 0x3e715bef, v%d" % (lg, lg))
            rne_bf16(k, lg, lg, 17)
            if 2 * w - 2 * i > 0:
                k("v_cmp_gt_u32 vcc, %d, v5" % (2 * w - 2 * i))
                k("v_cndmask_b32 v%d, v%d, v19, vcc" % (lg, lg))
        k("v_max_f32 v17, v%d, v%d" % (L, L + 1))
        for w in range(2, 8):
            k("v_max_f32 v17, v17, v%d" % (L + w))
        for w in range(8):
            k("v_sub_f32 v%d, v%d, v17" % (L + w, L + w))
            k("v_mul_f32 v%d, 0x3fb8aa3b, v%d" % (L + w, L + w))
            k("v_exp_f32 v%d, v%d" % (L + w, L + w))
        k("s_nop 0")
        k("v_add_f32 v18, v%d, v%d" % (L, L + 1))
        for w in range(2, 8):
            k("v_add_f32 v18, v18, v%d" % (L + w))
        k("v_rcp_f32 v18, v18")
        k("s_nop 0")
        for w in range(8):
            k("v_mul_f32 v%d, v%d, v18" % (L + w, L + w))
            rne_bf16(k, L + w, L + w, 17)
    stamp(k)
    seen = set()
    for j in range(11):
        k("s_waitcnt vmcnt(%d)" % min(63, XW + 3 * (10 - j)))
        for e in range(9):
            k("v_accvgpr_read_b32 v17, a%d" % (10 * j + e))
            k("v_lshlrev_b32 v%d, 16, v17" % (TMP + 2 * e))
            k("v_and_b32 v%d, 0xffff0000, v17" % (TMP + 2 * e + 1))
        for i in range(4):
            w = 7 + i - j
            if not (0 <= w <= 7):
                continue
            for d in range(18):
                if i not in seen:
                    k("v_mul_f32 v%d, v%d, v%d" % (OA + 18 * i + d, LG + 8 * i + w, TMP + d))
                else:
                    k("v_fmac_f32 v%d, v%d, v%d" % (OA + 18 * i + d, LG + 8 * i + w, TMP + d))
            seen.add(i)
    return OA, TMP, ld_w, XW, WR


def gen_attn_tail(k, OA, TMP, ld_w, XW, WR):
    k("v_mul_u32_u24 v17, 1168, v2")
    k("v_add_u32 v17, v17, v4")
    for i in range(4):
        for e in range(9):
            k("v_cvt_pk_bf16_f32 v%d, v%d, v%d" % (TMP + e, OA + 18 * i + 2 * e, OA + 18 * i + 2 * e + 1))
        for e in range(9):
            k("ds_write_b32 v17, v%d offset:%d" % (TMP + e, 2 * i * 1168 + 4 * e))
    k("s_waitcnt lgkmcnt(0)")
    k("s_barrier")
    stamp(k)
    if G2A:
        FA = 100
        k("""
        v_bfe_u32 v6, v0, 5, 1
        v_mul_u32_u24 v7, 1168, v3
        v_lshl_add_u32 v7, v6, 4, v7
        s_mul_i32 s16, s33, %d
        s_lshl_b32 s17, s35, 11
        s_add_u32 s16, s16, s17
        """ % (18 * 2048))
        for ks in range(36):
            k("ds_read_b128 v[%d:%d], v7 offset:%d" % (FA + 4 * ks, FA + 4 * ks + 3, 32 * ks))
        lskip = k.newlabel("g2end")
        nst = 0
        q = ['w'] * NBW
        for i in range(5):
            if i == 4:
                k("s_cmp_ge_u32 s35, 2")
                k("s_cbranch_scc1 %s" % lskip)
            A = 20 + 16 * (i & 1)
            acc = "v[%d:%d]" % (A, A + 15)
            for ks in range(36):
                f = i * 36 + ks
                idx = q.index('w')
                k("s_waitcnt vmcnt(%d)" % (len(q) - 1 - idx))
                q = q[idx + 1:]
                if i == 0:
                    k("s_waitcnt lgkmcnt(%d)" % min(15, 35 - ks))
                r = WR + 4 * (f % NBW)
                k("v_mfma_f32_32x32x16_bf16 %s, a[%d:%d], v[%d:%d], %s" % (acc, r, r + 3, FA + 4 * ks, FA + 4 * ks + 3, "0" if ks == 0 else acc))
                if f + NBW < 180:
                    ld_w(f + NBW)
                    q.append('w')
                if i and ks == 2:
                    B = 20 + 16 * ((i - 1) & 1)
                    for j in range(8):
                        k("v_cvt_pk_bf16_f32 v%d, v%d, v%d" % (52 + j, B + 2 * j, B + 2 * j + 1))
                    k("buffer_store_dwordx4 v[52:55], v1, s[12:15], s16 offen")
                    k("buffer_store_dwordx4 v[56:59], v1, s[12:15], s16 offen offset:1024")
                    k("s_add_u32 s16, s16, 8192")
                    q += ['s', 's']
        def tail(B):
            k("s_nop 15")
            for j in range(8):
                k("v_cvt_pk_bf16_f32 v%d, v%d, v%d" % (52 + j, B + 2 * j, B + 2 * j + 1))
            k("buffer_store_dwordx4 v[52:55], v1, s[12:15], s16 offen")
            k("buffer_store_dwordx4 v[56:59], v1, s[12:15], s16 offen offset:1024")
            k("s_waitcnt vmcnt(0)")
        tail(20)
        stamp(k)
        k("s_endpgm")
        k.label(lskip)
        tail(36)
        stamp(k)
        return
    k("""
    v_lshrrev_b32 v6, 5, v0
    v_mul_u32_u24 v7, 1168, v3
    v_lshl_add_u32 v7, v6, 4, v7
    v_lshlrev_b32 v8, 4, v3
    v_lshl_add_u32 v8, v6, 9, v8
    s_mul_i32 s16, s33, 36864
    """)
    for j in range(9):
        k("ds_read_b128 v[%d:%d], v7 offset:%d" % (20 + 4 * j, 23 + 4 * j, 128 * j))
    for j in range(9):
        k("s_waitcnt lgkmcnt(%d)" % (8 - j))
        if j:
            k("s_add_u32 s16, s16, 4096")
        k("buffer_store_dwordx4 v[%d:%d], v8, s[12:15], s16 offen" % (20 + 4 * j, 23 + 4 * j))


def gen_g3():
    k = K("g3_kernel")
    lend = k.newlabel("end")
    latt = k.newlabel("att")
    k("s_cmp_ge_u32 s2, 256")
    k("s_cbranch_scc1 %s" % lend)
    k.load_ptr(P_WS, 40)
    k.load_ptr(IN_W2, 44)
    k("s_sub_u32 s33, s2, 192")
    if NKC == 8:
        k("""
        s_and_b32 s30, s2, 7
        s_bfe_u32 s31, s2, 0x30003
        s_lshr_b32 s32, s2, 6
        """)
        RB, MB = 2, 8
    else:
        k("""
        s_and_b32 s30, s2, 3
        s_bfe_u32 s31, s2, 0x30003
        s_bfe_u32 s32, s2, 0x10002
        s_lshl_b32 s32, s32, 3
        s_add_u32 s31, s31, s32
        s_lshr_b32 s32, s2, 6
        """)
        RB, MB = 1, 4
    k("s_waitcnt lgkmcnt(0)")
    stamp_init(k, 40)
    k("s_cmp_ge_u32 s2, 192")
    k("s_cbranch_scc1 %s" % latt)
    k.srd(4, 40, S * F * 2, WS_H)
    k("s_mul_i32 s28, s31, %d" % (MB * 288 * 1024))
    k("s_mul_i32 s37, s30, %d" % (36864 * 8 // NKC))
    k("s_add_u32 s28, s28, s37")
    k.srd(8, 44, F * D * 2)
    k("s_mov_b32 s16, s10")
    k("s_mul_i32 s20, s30, %d" % (576 * 1152 * 8 // NKC))
    k("s_mul_i32 s37, s32, %d" % (6 * 64))
    k("s_add_u32 s20, s20, s37")
    k.srd(12, 40, NKC * PART_STRIDE, WS_PART)
    k("s_mul_i32 s29, s30, %d" % PART_STRIDE)
    k("s_mul_i32 s37, s31, %d" % (MB * 18 * 4096))
    k("s_add_u32 s29, s29, s37")
    k("s_mul_i32 s37, s32, %d" % (6 * 4096))
    k("s_add_u32 s29, s29, s37")
    k("s_mov_b32 s17, 5")
    e = Eng(k, 1, 'f32', 288 * 1024, D * 2, 18 * 4096, ofrag=True, RB=RB)
    e.run("y")
    k("s_branch %s" % lend)
    k.label(latt)
    gen_attn_part(k)
    k.label(lend)
    return k


def gen_fin():
    k = K("fin_kernel")
    lend = k.newlabel("end")
    k("s_cmp_ge_u32 s2, 1152")
    k("s_cbranch_scc1 %s" % lend)
    k.load_ptr(P_WS, 40)
    k.load_ptr(IN_X, 42)
    k.load_ptr(IN_B2, 44)
    k.load_ptr(P_OUT, 46)
    NB = 16
    FA, FW, ACC, P, SM, XR, BR = 16, 80, 144, 160, 224, 240, 248
    k("""
    v_and_b32 v1, 63, v0
    s_and_b32 s30, s2, 7
    s_lshr_b32 s31, s2, 3
    s_mul_i32 s32, s31, 57
    s_lshr_b32 s32, s32, 10
    s_mul_i32 s33, s32, 18
    s_sub_u32 s33, s31, s33
    s_lshl_b32 s30, s30, 3
    s_add_u32 s30, s30, s32
    v_lshlrev_b32 v2, 4, v1
    v_lshrrev_b32 v3, 5, v1
    v_and_b32 v4, 31, v1
    """)
    k("s_waitcnt lgkmcnt(0)")
    k.srd(4, 40, S * D * 2, WS_O)
    k.srd(8, 40, D * D * 2, WS_WOT)
    k.srd(12, 40, NKC * PART_STRIDE, WS_PART)
    k.srd(16, 42, S * D * 2)
    k.srd(20, 44, D * 2)
    k.srd(48, 46, S * D * 2)
    k("s_mul_i32 s34, s30, 36864")
    k("s_mul_i32 s35, s33, 36864")
    k("s_mul_i32 s36, s30, %d" % (18 * 4096))
    k("s_lshl_b32 s37, s33, 12")
    k("s_add_u32 s36, s36, s37")
    vm = VM(k)
    soff = {}

    def ld_ab(ks):
        if ks % 4 == 0 and ks:
            k("s_add_u32 s34, s34, 4096")
            k("s_add_u32 s35, s35, 4096")
        sl = ks % NB
        vm.issue("buffer_load_dwordx4 v[%d:%d], v2, s[4:7], s34 offen offset:%d" % (FA + 4 * sl, FA + 4 * sl + 3, (ks % 4) * 1024), ('a', ks))
        vm.issue("buffer_load_dwordx4 v[%d:%d], v2, s[8:11], s35 offen offset:%d" % (FW + 4 * sl, FW + 4 * sl + 3, (ks % 4) * 1024), ('w', ks))

    def ld_p(sp):
        for g in range(4):
            r = P + 16 * (sp % 4) + 4 * g
            vm.issue("buffer_load_dwordx4 v[%d:%d], v2, s[12:15], s36 offen offset:%d" % (r, r + 3, g * 1024), ('p', sp))
        k("s_add_u32 s36, s36, %d" % PART_STRIDE)

    if G2A:
        k("s_lshr_b32 s34, s36, 1")
        vm.issue("buffer_load_dwordx4 v[%d:%d], v2, s[4:7], s34 offen" % (FA, FA + 3), 's')
        vm.issue("buffer_load_dwordx4 v[%d:%d], v2, s[4:7], s34 offen offset:1024" % (FA + 4, FA + 7), 's')
    else:
        for ks in range(NB):
            ld_ab(ks)
    for sp in range(4):
        ld_p(sp)
    k("""
    s_lshl_b32 s38, s30, 5
    v_add_u32 v5, s38, v4
    s_movk_i32 s39, 1152
    v_mul_lo_u32 v5, v5, s39
    s_lshl_b32 s38, s33, 6
    v_lshlrev_b32 v6, 3, v3
    v_add_u32 v6, s38, v6
    v_add_u32 v7, v5, v6
    v_lshl_add_u32 v8, v3, 5, v5
    v_add_u32 v8, s38, v8
    """)
    for g in range(4):
        vm.issue("buffer_load_dwordx2 v[%d:%d], v7, s[16:19], 0 offen offset:%d" % (XR + 2 * g, XR + 2 * g + 1, 16 * g), 'x')
        vm.issue("buffer_load_dwordx2 v[%d:%d], v6, s[20:23], 0 offen offset:%d" % (BR + 2 * g, BR + 2 * g + 1, 16 * g), 'x')
    acc = "v[%d:%d]" % (ACC, ACC + 15)
    for ks in range(36):
        sl = ks % NB
        if G2A:
            if ks != NB - 1:
                continue
            vm.wait('s')
            for j in range(8):
                k("v_lshlrev_b32 v%d, 16, v%d" % (ACC + 2 * j, FA + j))
                k("v_and_b32 v%d, 0xffff0000, v%d" % (ACC + 2 * j + 1, FA + j))
        vm.wait(('w', ks))
        if not G2A:
          k("v_mfma_f32_32x32x16_bf16 %s, v[%d:%d], v[%d:%d], %s" % (acc, FW + 4 * sl, FW + 4 * sl + 3, FA + 4 * sl, FA + 4 * sl + 3, "0" if ks == 0 else acc))
        if ks + NB < 36 and not G2A:
            ld_ab(ks + NB)
        if ks == NB - 1:
            vm.wait(('p', 3))
            for r in range(16):
                k("v_add_f32 v%d, v%d, v%d" % (SM + r, P + r, P + 16 + r))
                k("v_add_f32 v%d, v%d, v%d" % (SM + r, SM + r, P + 32 + r))
                k("v_add_f32 v%d, v%d, v%d" % (SM + r, SM + r, P + 48 + r))
            for sp in range(4, NKC):
                ld_p(sp)
    if NKC == 8:
        vm.wait(('p', 7))
        for r in range(16):
            for sp in range(4):
                k("v_add_f32 v%d, v%d, v%d" % (SM + r, SM + r, P + 16 * sp + r))
    elif not G2A:
        k("s_nop 15")
    vm.wait('x')
    T = 10
    OUTP = P
    pos = {0: 0, 2: 2, 1: 4, 3: 6}
    for g in range(4):
        for i in range(4):
            y = SM + 4 * g + i
            a = ACC + 4 * g + i
            rne_bf16(k, y, y, T)
            src = BR + 2 * g + i // 2
            k(("v_lshlrev_b32 v%d, 16, v%d" if i % 2 == 0 else "v_and_b32 v%d, 0xffff0000, v%d") % (T + 1, src))
            k("v_add_f32 v%d, v%d, v%d" % (y, y, T + 1))
            rne_bf16(k, y, y, T)
            k("v_mul_f32 v%d, 0xbfb8aa3b, v%d" % (T + 1, y))
            k("v_exp_f32 v%d, v%d" % (T + 1, T + 1))
            k("s_nop 0")
            k("v_add_f32 v%d, 1.0, v%d" % (T + 1, T + 1))
            k("v_rcp_f32 v%d, v%d" % (T + 1, T + 1))
            k("s_nop 0")
            k("v_mul_f32 v%d, v%d, v%d" % (y, y, T + 1))
            rne_bf16(k, y, y, T)
            if not G2A:
                rne_bf16(k, a, a, T)
            k("v_mul_f32 v%d, v%d, v%d" % (y, y, a))
            rne_bf16(k, y, y, T)
            src = XR + 2 * g + i // 2
            k(("v_lshlrev_b32 v%d, 16, v%d" if i % 2 == 0 else "v_and_b32 v%d, 0xffff0000, v%d") % (T + 1, src))
            k("v_add_f32 v%d, v%d, v%d" % (y, y, T + 1))
        k("v_cvt_pk_bf16_f32 v%d, v%d, v%d" % (OUTP + pos[g], SM + 4 * g, SM + 4 * g + 1))
        k("v_cvt_pk_bf16_f32 v%d, v%d, v%d" % (OUTP + pos[g] + 1, SM + 4 * g + 2, SM + 4 * g + 3))
    k("s_nop 1")
    for j in range(2):
        k("v_permlane32_swap_b32 v%d, v%d" % (OUTP + j, OUTP + 2 + j))
        k("v_permlane32_swap_b32 v%d, v%d" % (OUTP + 4 + j, OUTP + 6 + j))
    k("buffer_store_dwordx4 v[%d:%d], v8, s[48:51], 0 offen" % (OUTP, OUTP + 3))
    k("buffer_store_dwordx4 v[%d:%d], v8, s[48:51], 0 offen offset:16" % (OUTP + 4, OUTP + 7))
    k.label(lend)
    return k


def main():
    kerns = []
    launches = []
    k, v, n = gen_ln2(); kerns.append(k.text(v)); launches.append((k.name, n, 0))
    import gen2
    sk = os.environ.get('STAMPK', 'g3')
    gen2.STAMP = STAMP and sk == 'g1'
    k = gen_g1c() if os.environ.get("G1CB", "2") == "2" else gen_g1(int(os.environ.get('WC', '2')), hfrag=True)
    kerns.append(k.text(512, accum=256)); launches.append((k.name, 256, LDS_TOTAL))
    gen2.STAMP = STAMP and sk == 'g3'
    k = gen_g3(); kerns.append(k.text(512, accum=256)); launches.append((k.name, 256, LDS_TOTAL))
    k = gen_fin(); kerns.append(k.text(256, accum=256)); launches.append((k.name, 1152, 0, 64))
    out = []
    for L in launches:
        n, g, lds = L[:3]
        bs = L[3] if len(L) > 3 else 256
        out.append("; @launch kernel=%s grid=(%d,1,1) block=(%d,1,1) lds=%d" % (n, g, bs, lds))
    out.append('.amdgcn_target "amdgcn-amd-amdhsa--gfx950"')
    out.append(".text")
    for t, d in kerns:
        out.append(t)
    out.append('.section .rodata,"a"')
    for t, d in kerns:
        out.append(".p2align 6")
        out.append(d)
    fn = sys.argv[1] if len(sys.argv) > 1 else "v3.s"
    txt = "\n".join(out) + "\n"
    if not os.environ.get("NOSC1"):
        lines = txt.split("\n")
        mode = False
        for i, l in enumerate(lines):
            if l.startswith("hpart") or l.startswith("g3_kernel:") or l.startswith("ln_kernel:"):
                mode = True
            if l.startswith("fin_kernel:") or l.startswith("g1_kernel:"):
                mode = False
            if mode and "buffer_store" in l:
                lines[i] = l + " sc1"
        txt = "\n".join(lines)
    open(fn, "w").write(txt)


if __name__ == "__main__":
    main()
```

```python
import sys, os
sys.path.insert(0, os.path.dirname(os.path.abspath(__file__)))
from gen2 import *

WS_WOT = 0x2800000
ATT2 = os.environ.get('ATT2', '1') == '1'
PART_STRIDE = 64 * 18 * 4096
NKC = int(os.environ.get('NKC', '4'))
G2A = os.environ.get('G2A', '1') == '1'
NBW = int(os.environ.get('NBW', '36' if ATT2 else '24'))
NBL = int(os.environ.get('NBL', '24')) if ATT2 else 0
LDS_WB = 37888


class VM:
    def __init__(self, k):
        self.k = k
        self.q = []

    def issue(self, txt, tag):
        fx = os.environ.get("FINX", "")
        if (fx == "nop" and tag[0] == 'p') or (fx == "nog" and tag[0] in 'aw') or (fx == "now" and tag[0] == 'w') or (fx == "noa" and tag[0] == 'a'):
            return
        self.k(txt)
        self.q.append(tag)

    def wait(self, tag):
        idx = None
        for i in range(len(self.q) - 1, -1, -1):
            if self.q[i] == tag:
                idx = i
                break
        if idx is None:
            return
        n = len(self.q) - 1 - idx
        assert n <= 63
        self.k("s_waitcnt vmcnt(%d)" % n)
        self.q = self.q[idx + 1:]


def gen_ln2():
    k, v = gen_ln()
    assert k.lines[0].strip() == "s_cmp_ge_u32 s2, 512"
    lt = "wot_ln"
    k.lines[1] = "    s_cbranch_scc1 %s" % lt
    endl = k.lines.pop()
    if not os.environ.get("NOPF"):
        i0 = k.lines.index("    s_load_dwordx2 s[6:7], s[0:1], 80")
        pre = K("tmp")
        pre.load_ptr(IN_WQKV, 24)
        pre.load_ptr(IN_W1, 26)
        pre.load_ptr(IN_W2, 28)
        pre.load_ptr(IN_B1, 30)
        pre.load_ptr(IN_B2, 32)
        k.lines[i0 + 1:i0 + 1] = pre.lines
        i1 = k.lines.index("    s_mov_b64 exec, s[20:21]")
        pre = K("tmp")
        pre.srd(36, 24, D * 3 * D * 2)
        pre.srd(40, 26, D * F * 2)
        pre.srd(44, 28, D * F * 2)
        pre.srd(48, 30, F * 2)
        pre.srd(52, 32, D * 2)
        PFS = int(os.environ.get("PFS", "0"))
        if os.environ.get("PFW2", "g1") == "tr2":
            pre("s_lshl_b32 s34, s2, 8")
            pre("v_add_u32 v44, s34, v0")
            pre("v_mul_u32_u24 v45, 384, v44")
            pre("v_lshrrev_b32 v46, 3, v44")
            pre("v_mul_u32_u24 v46, 3456, v46")
            pre("v_and_b32 v47, 7, v44")
            pre("v_lshl_add_u32 v46, v47, 9, v46")
            pre("v_lshlrev_b32 v44, 7, v44")
            pf = [(36, 46), (40, 45), (48, 44), (52, 44)]
            for sr, vo in pf:
                pre("buffer_load_dword v40, v%d, s[%d:%d], 0 offen" % (vo, sr, sr + 3))
        elif PFS == 0:
            pre("v_lshlrev_b32 v44, 4, v0")
            pre("s_lshl_b32 s34, s2, 12")
            pre("s_add_u32 s35, s34, 0x200000")
            pre("s_add_u32 s56, s34, 0x400000")
            pf = [(36, 34), (40, 34), (40, 35), (40, 56), (48, 34), (44, 34), (44, 35), (44, 56), (52, 34)]
            if os.environ.get("PFW2", "g1") != "ln":
                pf = [p for p in pf if p[0] != 44]
            for sr, so in pf:
                pre("buffer_load_dwordx4 v[40:43], v44, s[%d:%d], s%d offen" % (sr, sr + 3, so))
        else:
            sh = {64: 6, 128: 7}[PFS]
            pre("v_lshlrev_b32 v44, %d, v0" % sh)
            pre("s_lshl_b32 s34, s2, %d" % (8 + sh))
            pf = [(36, 34), (40, 34), (48, 34), (44, 34), (52, 34)]
            if os.environ.get("PFW2", "g1") != "ln":
                pf = [p for p in pf if p[0] != 44]
            if ATT2:
                pf = [p for p in pf if p[0] != 36]
            for sr, so in pf:
                pre("buffer_load_dword v40, v44, s[%d:%d], s%d offen" % (sr, sr + 3, so))
        k.lines[i1 + 1:i1 + 1] = pre.lines
        i2 = k.lines.index("    s_waitcnt vmcnt(0)")
        k.lines[i2] = "    s_waitcnt vmcnt(%d)" % len(pf)
        k("s_waitcnt vmcnt(0)")
        v = 48
    k("s_endpgm")
    k.label(lt)
    k("s_cmp_ge_u32 s2, %d" % (512 + 162))
    k("s_cbranch_scc1 %s" % ("wqp_ln" if ATT2 else endl[:-1]))
    k.load_ptr(IN_WO, 4)
    k.load_ptr(P_WS, 6)
    k("s_waitcnt lgkmcnt(0)")
    k.srd(8, 4, D * D * 2)
    k.srd(12, 6, D * D * 2, WS_WOT)
    k("""
    v_lshrrev_b32 v1, 6, v0
    s_nop 0
    v_readfirstlane_b32 s16, v1
    s_sub_u32 s17, s2, 512
    s_lshl_b32 s17, s17, 2
    s_add_u32 s16, s16, s17
    s_mul_i32 s17, s16, 1821
    s_lshr_b32 s17, s17, 16
    s_mul_i32 s18, s17, 36
    s_sub_u32 s18, s16, s18
    v_and_b32 v1, 63, v0
    v_lshrrev_b32 v2, 5, v1
    v_and_b32 v3, 31, v1
    v_mul_u32_u24 v2, 9216, v2
    v_lshl_add_u32 v2, v3, 1, v2
    s_mul_i32 s19, s18, 18432
    s_lshl_b32 s20, s17, 6
    s_add_u32 s19, s19, s20
    """)
    for e in range(8):
        if e == 3:
            k("s_add_u32 s19, s19, 3456")
        if e == 6:
            k("s_add_u32 s19, s19, 3456")
        k("buffer_load_ushort v%d, v2, s[8:11], s19 offen offset:%d" % (8 + e, (e % 3) * 1152))
    k("s_lshl_b32 s21, s16, 10")
    k("v_lshlrev_b32 v3, 4, v1")
    k("s_waitcnt vmcnt(0)")
    for j in range(4):
        k("v_lshl_or_b32 v%d, v%d, 16, v%d" % (4 + j, 9 + 2 * j, 8 + 2 * j))
    k("buffer_store_dwordx4 v[4:7], v3, s[12:15], s21 offen")
    if ATT2:
        k("s_endpgm")
        k.label("wqp_ln")
        k("s_cmp_ge_u32 s2, %d" % (512 + 162 + 144))
        k("s_cbranch_scc1 %s" % endl[:-1])
        k.load_ptr(IN_WQKV, 4)
        k.load_ptr(P_WS, 6)
        k("""
        v_lshrrev_b32 v1, 6, v0
        v_and_b32 v2, 31, v0
        v_readfirstlane_b32 s16, v1
        v_bfe_u32 v3, v0, 5, 1
        s_sub_u32 s17, s2, %d
        s_lshl_b32 s17, s17, 2
        s_add_u32 s16, s16, s17
        s_mul_i32 s16, s16, 3456
        v_mul_u32_u24 v4, 36, v2
        v_lshl_add_u32 v5, v3, 4, v4
        v_lshlrev_b32 v6, 4, v2
        v_lshl_add_u32 v6, v3, 9, v6
        v_mul_u32_u24 v7, 1152, v3
        v_add_u32 v8, v7, v4
        v_lshl_add_u32 v9, v2, 2, v7
        """ % (512 + 162))
        k("s_waitcnt lgkmcnt(0)")
        k.srd(8, 4, D * 3 * D * 2)
        k.srd(12, 6, D * 3 * D * 2, WS_WQP)
        for sec in range(3):
            k("buffer_load_dwordx4 v[%d:%d], v5, s[8:11], s16 offen offset:%d" % (12 + 4 * sec, 15 + 4 * sec, sec * 1152))
        k("buffer_load_dword v24, v8, s[8:11], s16 offen offset:32")
        k("buffer_load_dword v25, v4, s[8:11], s16 offen offset:%d" % (2304 + 32))
        for sec in range(3):
            k("s_waitcnt vmcnt(%d)" % (4 - sec + sec))
            k("buffer_store_dwordx4 v[%d:%d], v6, s[12:15], s16 offen offset:%d" % (12 + 4 * sec, 15 + 4 * sec, sec * 1152))
        k("s_waitcnt vmcnt(3)")
        k("v_lshlrev_b32 v10, 2, v2")
        k("buffer_store_dword v24, v9, s[12:15], s16 offen offset:1024")
        k("buffer_store_dword v25, v10, s[12:15], s16 offen offset:%d" % (2304 + 1024))
        k.lines.append(endl)
        return k, v, 512 + 162 + 144
    k.lines.append(endl)
    return k, v, 512 + 162


def gen_attn_part(k):
    if ATT2:
        OA, TMP, ld_w, XW, WR = gen_attn2(k)
    else:
        OA, TMP, ld_w, XW, WR = gen_attn1(k)
    gen_attn_tail(k, OA, TMP, ld_w, XW, WR)


def gen_attn2(k):
    QR, KR, TMP, PP = 62, 102, 212, 62
    LG = 20
    OA = 102
    k.srd(8, 40, S * 3 * D * 2, WS_QKV)
    k.srd(12, 40, S * D * 2, WS_O)
    k.srd(48, 40, D * D * 2, WS_WOT)
    k("""
    v_and_b32 v3, 31, v0
    v_lshrrev_b32 v2, 6, v0
    s_nop 0
    v_readfirstlane_b32 s35, v2
    v_lshlrev_b32 v2, 3, v2
    v_bfe_u32 v4, v0, 5, 1
    v_add_u32 v2, v2, v4
    s_lshl_b32 s16, s33, 5
    v_add_u32 v5, s16, v2
    v_lshlrev_b32 v18, 4, v3
    v_mul_u32_u24 v19, 12, v3
    s_movk_i32 s17, 3456
    s_mov_b32 s36, 0x05040100
    s_mov_b32 s37, 0x07060302
    """)
    AB = TMP
    def ld9(dst, base, j, off):
        k("buffer_load_dwordx4 %s[%d:%d], v%d, s[8:11], 0 offen offset:%d" % (dst, base, base + 3, 6 + j, off))
        k("buffer_load_dwordx4 %s[%d:%d], v%d, s[8:11], 0 offen offset:%d" % (dst, base + 4, base + 7, 6 + j, off + 512))
        k("buffer_load_dword %s%d, v%d, s[8:11], 0 offen offset:%d" % (dst, base + 8, AB + j, off + 1024))
    for j in range(11):
        d = 2 * j - 14
        if d < 0:
            k("v_subrev_u32 v17, %d, v5" % (-d))
            k("v_max_i32 v17, 0, v17")
        else:
            k("v_add_u32 v17, %d, v5" % d)
        k("v_mul_lo_u32 v%d, v17, s17" % (6 + j))
        k("v_add_u32 v%d, v%d, v18" % (6 + j, 6 + j))
        k("v_sub_u32 v%d, v%d, v19" % (AB + j, 6 + j))
    for i in range(4):
        ld9("v", QR + 10 * i, 7 + i, 0)
    for j in range(11):
        ld9("v", KR + 10 * j, j, 1152)
    for j in range(11):
        ld9("a", 10 * j, j, 2304)
    NPF = 3
    k("s_lshr_b32 s34, s33, 3")
    k("s_mul_i32 s34, s34, %d" % (NPF * 32768))
    k("v_lshlrev_b32 v17, 7, v0")
    for j in range(NPF):
        k("buffer_load_dword v250, v17, s[48:51], s34 offen")
        k("s_add_u32 s34, s34, 32768")
    WR = 256 - 4 * NBW
    assert WR >= 110
    def ld_w(f):
        if f % 4 == 0 and f:
            k("s_add_u32 s34, s34, %d" % (4096 + (110592 if f % 36 == 0 else 0)))
        sl = f % (NBW + NBL)
        if sl < NBW:
            r = WR + 4 * sl
            k("buffer_load_dwordx4 a[%d:%d], v1, s[48:51], s34 offen offset:%d" % (r, r + 3, (f % 4) * 1024))
        else:
            k("s_add_u32 m0, s39, %d" % ((sl - NBW) * 1024))
            k("s_add_u32 s38, s34, %d" % ((f % 4) * 1024))
            k("buffer_load_dwordx4 v1, s[48:51], s38 offen lds")
    k("v_and_b32 v1, 63, v0")
    k("v_lshlrev_b32 v1, 4, v1")
    k("s_mul_i32 s34, s35, 36864")
    k("s_mul_i32 s39, s35, %d" % (NBL * 1024))
    k("s_add_u32 s39, s39, %d" % LDS_WB)
    k("v_add_u32 v251, s39, v1")
    for j in range(11):
        k("s_waitcnt vmcnt(%d)" % min(63, NPF + 33 + 3 * (10 - j)))
        if j == 0:
            stamp(k)
        for e in range(9):
            for i in range(4):
                w = 7 + i - j
                if not (0 <= w <= 7):
                    continue
                lg = LG + 8 * i + w
                k("v_dot2_f32_bf16 v%d, v%d, v%d, %s" % (lg, QR + 10 * i + e, KR + 10 * j + e, "0" if e == 0 else "v%d" % lg))
    for f in range(NBW + NBL):
        ld_w(f)
    XW = NBW + NBL + NPF
    stamp(k)
    for r in range(32):
        k("v_cvt_pk_bf16_f32 v%d, 0, v%d" % (LG + r, LG + r))
    for r in range(32):
        k("v_mul_f32 v%d, 0x3e715bef, v%d" % (LG + r, LG + r))
    for r in range(32):
        k("v_cvt_pk_bf16_f32 v%d, 0, v%d" % (LG + r, LG + r))
    lnm = k.newlabel("nomask")
    k("s_cmp_lg_u32 s33, 0")
    k("s_cbranch_scc1 %s" % lnm)
    k("v_mov_b32 v19, 0xce6e0000")
    for i in range(4):
        for w in range(8):
            if 2 * w - 2 * i > 0:
                k("v_cmp_gt_u32 vcc, %d, v5" % (2 * w - 2 * i))
                k("v_cndmask_b32 v%d, v%d, v19, vcc" % (LG + 8 * i + w, LG + 8 * i + w))
    k.label(lnm)
    M = TMP
    for i in range(4):
        L = LG + 8 * i
        k("v_max3_f32 v%d, v%d, v%d, v%d" % (M + i, L, L + 1, L + 2))
    for i in range(4):
        L = LG + 8 * i
        k("v_max3_f32 v%d, v%d, v%d, v%d" % (M + i, M + i, L + 3, L + 4))
    for i in range(4):
        L = LG + 8 * i
        k("v_max3_f32 v%d, v%d, v%d, v%d" % (M + i, M + i, L + 5, L + 6))
    for i in range(4):
        L = LG + 8 * i
        k("v_max_f32 v%d, v%d, v%d" % (M + i, M + i, L + 7))
    for r in range(32):
        k("v_sub_f32 v%d, v%d, v%d" % (LG + r, LG + r, M + r // 8))
    for r in range(32):
        k("v_mul_f32 v%d, 0x3fb8aa3b, v%d" % (LG + r, LG + r))
    for r in range(32):
        k("v_exp_f32 v%d, v%d" % (LG + r, LG + r))
    for i in range(4):
        k("v_add_f32 v%d, v%d, v%d" % (M + i, LG + 8 * i, LG + 8 * i + 1))
    for w in range(2, 8):
        for i in range(4):
            k("v_add_f32 v%d, v%d, v%d" % (M + i, M + i, LG + 8 * i + w))
    for i in range(4):
        k("v_rcp_f32 v%d, v%d" % (M + i, M + i))
    k("s_nop 0")
    for r in range(32):
        k("v_mul_f32 v%d, v%d, v%d" % (LG + r, LG + r, M + r // 8))
    pk = {}
    n = 0
    for i in range(4):
        for m in range(6):
            wl, wh = 7 + i - 2 * m, 7 + i - (2 * m + 1)
            okl, okh = 0 <= wl <= 7, (0 <= wh <= 7 and m < 5)
            if not (okl or okh):
                continue
            sl = "v%d" % (LG + 8 * i + wl) if okl else "0"
            sh = "v%d" % (LG + 8 * i + wh) if okh else "0"
            k("v_cvt_pk_bf16_f32 v%d, %s, %s" % (PP + n, sl, sh))
            pk[(i, m)] = PP + n
            n += 1
            if m == 5:
                k("v_cvt_pk_bf16_f32 v%d, 0, %s" % (PP + n, sl))
                pk[(i, m, 'hi')] = PP + n
                n += 1
    stamp(k)
    seen = set()
    for m in range(6):
        j = min(2 * m + 1, 10)
        k("s_waitcnt vmcnt(%d)" % min(63, XW + 3 * (10 - j)))
        for e in range(9):
            t = TMP + 4 * (e & 1)
            k("v_accvgpr_read_b32 v%d, a%d" % (t, 10 * (2 * m) + e))
            if m < 5:
                k("v_accvgpr_read_b32 v%d, a%d" % (t + 1, 10 * (2 * m + 1) + e))
                k("v_perm_b32 v%d, v%d, v%d, s36" % (t + 2, t + 1, t))
                k("v_perm_b32 v%d, v%d, v%d, s37" % (t + 3, t + 1, t))
            for i in range(4):
                if (i, m) not in pk:
                    continue
                for hh in range(2):
                    o = OA + 18 * i + 2 * e + hh
                    if m < 5:
                        src, p = t + 2 + hh, pk[(i, m)]
                    else:
                        src, p = t, (pk[(i, m)] if hh == 0 else pk[(i, m, 'hi')])
                    k("v_dot2_f32_bf16 v%d, v%d, v%d, %s" % (o, src, p, "v%d" % o if i in seen else "0"))
        for i in range(4):
            if (i, m) in pk:
                seen.add(i)
    k("s_nop 2")
    k("v_mul_u32_u24 v4, 36, v3")
    return OA, TMP, ld_w, XW, WR


def gen_attn1(k):
    QR, KR, QF, TMP = 110, 70, 180, 52
    LG = 20
    OA = 70
    k.srd(8, 40, S * 3 * D * 2, WS_QKV)
    k.srd(12, 40, S * D * 2, WS_O)
    k("""
    v_and_b32 v3, 31, v0
    v_lshrrev_b32 v2, 6, v0
    v_lshlrev_b32 v2, 3, v2
    v_bfe_u32 v4, v0, 5, 1
    v_add_u32 v2, v2, v4
    s_lshl_b32 s16, s33, 5
    v_add_u32 v5, s16, v2
    v_mul_u32_u24 v4, 36, v3
    s_movk_i32 s17, 3456
    """)
    def ld9(dst, base, addr, off):
        k("buffer_load_dwordx4 %s[%d:%d], v%d, s[8:11], 0 offen offset:%d" % (dst, base, base + 3, addr, off))
        k("buffer_load_dwordx4 %s[%d:%d], v%d, s[8:11], 0 offen offset:%d" % (dst, base + 4, base + 7, addr, off + 16))
        k("buffer_load_dword %s%d, v%d, s[8:11], 0 offen offset:%d" % (dst, base + 8, addr, off + 32))
    for j in range(11):
        d = 2 * j - 14
        if d < 0:
            k("v_subrev_u32 v17, %d, v5" % (-d))
            k("v_max_i32 v17, 0, v17")
        else:
            k("v_add_u32 v17, %d, v5" % d)
        k("v_mul_lo_u32 v%d, v17, s17" % (6 + j))
        k("v_add_u32 v%d, v%d, v4" % (6 + j, 6 + j))
    for i in range(4):
        ld9("a", QR + 10 * i, 6 + 7 + i, 0)
    for j in range(11):
        ld9("v", KR + 10 * j, 6 + j, 1152)
    for j in range(11):
        ld9("a", 10 * j, 6 + j, 2304)
    XW = 0
    WR = 256 - 4 * NBW
    def ld_w(f):
        if f % 4 == 0 and f:
            k("s_add_u32 s34, s34, %d" % (4096 + (110592 if f % 36 == 0 else 0)))
        r = WR + 4 * (f % NBW)
        k("buffer_load_dwordx4 a[%d:%d], v1, s[48:51], s34 offen offset:%d" % (r, r + 3, (f % 4) * 1024))
    if G2A:
        k.srd(48, 40, D * D * 2, WS_WOT)
        k("v_lshrrev_b32 v17, 6, v0")
        k("v_and_b32 v1, 63, v0")
        k("v_readfirstlane_b32 s35, v17")
        k("v_lshlrev_b32 v1, 4, v1")
        k("s_mul_i32 s34, s35, 36864")
        for f in range(NBW):
            ld_w(f)
        XW = NBW
    k("s_waitcnt vmcnt(63)")
    k("s_waitcnt vmcnt(%d)" % 63)
    stamp(k)
    for i in range(4):
        for e in range(9):
            k("v_accvgpr_read_b32 v17, a%d" % (QR + 10 * i + e))
            k("v_lshlrev_b32 v%d, 16, v17" % (QF + 18 * i + 2 * e))
            k("v_and_b32 v%d, 0xffff0000, v17" % (QF + 18 * i + 2 * e + 1))
    for j in range(11):
        k("s_waitcnt vmcnt(%d)" % min(63, XW + 33 + 3 * (10 - j)))
        for e in range(9):
            k("v_lshlrev_b32 v%d, 16, v%d" % (TMP + 2 * e, KR + 10 * j + e))
            k("v_and_b32 v%d, 0xffff0000, v%d" % (TMP + 2 * e + 1, KR + 10 * j + e))
        for i in range(4):
            w = 7 + i - j
            if not (0 <= w <= 7):
                continue
            lg = LG + 8 * i + w
            for d in range(18):
                if d == 0:
                    k("v_mul_f32 v%d, v%d, v%d" % (lg, QF + 18 * i, TMP))
                else:
                    k("v_fmac_f32 v%d, v%d, v%d" % (lg, QF + 18 * i + d, TMP + d))
    stamp(k)
    k("v_mov_b32 v19, 0xce6e0000")
    for i in range(4):
        L = LG + 8 * i
        for w in range(8):
            lg = L + w
            rne_bf16(k, lg, lg, 17)
            k("v_mul_f32 v%d, 0x3e715bef, v%d" % (lg, lg))
            rne_bf16(k, lg, lg, 17)
            if 2 * w - 2 * i > 0:
                k("v_cmp_gt_u32 vcc, %d, v5" % (2 * w - 2 * i))
                k("v_cndmask_b32 v%d, v%d, v19, vcc" % (lg, lg))
        k("v_max_f32 v17, v%d, v%d" % (L, L + 1))
        for w in range(2, 8):
            k("v_max_f32 v17, v17, v%d" % (L + w))
        for w in range(8):
            k("v_sub_f32 v%d, v%d, v17" % (L + w, L + w))
            k("v_mul_f32 v%d, 0x3fb8aa3b, v%d" % (L + w, L + w))
            k("v_exp_f32 v%d, v%d" % (L + w, L + w))
        k("s_nop 0")
        k("v_add_f32 v18, v%d, v%d" % (L, L + 1))
        for w in range(2, 8):
            k("v_add_f32 v18, v18, v%d" % (L + w))
        k("v_rcp_f32 v18, v18")
        k("s_nop 0")
        for w in range(8):
            k("v_mul_f32 v%d, v%d, v18" % (L + w, L + w))
            rne_bf16(k, L + w, L + w, 17)
    stamp(k)
    seen = set()
    for j in range(11):
        k("s_waitcnt vmcnt(%d)" % min(63, XW + 3 * (10 - j)))
        for e in range(9):
            k("v_accvgpr_read_b32 v17, a%d" % (10 * j + e))
            k("v_lshlrev_b32 v%d, 16, v17" % (TMP + 2 * e))
            k("v_and_b32 v%d, 0xffff0000, v17" % (TMP + 2 * e + 1))
        for i in range(4):
            w = 7 + i - j
            if not (0 <= w <= 7):
                continue
            for d in range(18):
                if i not in seen:
                    k("v_mul_f32 v%d, v%d, v%d" % (OA + 18 * i + d, LG + 8 * i + w, TMP + d))
                else:
                    k("v_fmac_f32 v%d, v%d, v%d" % (OA + 18 * i + d, LG + 8 * i + w, TMP + d))
            seen.add(i)
    return OA, TMP, ld_w, XW, WR


def gen_attn_tail(k, OA, TMP, ld_w, XW, WR):
    k("v_mul_u32_u24 v17, 1168, v2")
    k("v_add_u32 v17, v17, v4")
    for i in range(4):
        for e in range(9):
            k("v_cvt_pk_bf16_f32 v%d, v%d, v%d" % (TMP + e, OA + 18 * i + 2 * e, OA + 18 * i + 2 * e + 1))
        for e in range(9):
            k("ds_write_b32 v17, v%d offset:%d" % (TMP + e, 2 * i * 1168 + 4 * e))
    k("s_waitcnt lgkmcnt(0)")
    k("s_barrier")
    stamp(k)
    if G2A:
        FA = 100
        k("""
        v_bfe_u32 v6, v0, 5, 1
        v_mul_u32_u24 v7, 1168, v3
        v_lshl_add_u32 v7, v6, 4, v7
        s_mul_i32 s16, s33, %d
        s_lshl_b32 s17, s35, 11
        s_add_u32 s16, s16, s17
        """ % (18 * 2048))
        for ks in range(36):
            k("ds_read_b128 v[%d:%d], v7 offset:%d" % (FA + 4 * ks, FA + 4 * ks + 3, 32 * ks))
        lskip = k.newlabel("g2end")
        NR = NBW + NBL
        PDL = 3
        WT = 244
        WT = 84
        q = [('w', f) for f in range(NR)]
        lq = [('fa', ks) for ks in range(36)]
        def vwait(tag):
            if tag in q:
                idx = q.index(tag)
                k("s_waitcnt vmcnt(%d)" % min(63, len(q) - 1 - idx))
                del q[:idx + 1]
        def lwait(tag):
            if tag in lq:
                idx = lq.index(tag)
                k("s_waitcnt lgkmcnt(%d)" % min(15, len(lq) - 1 - idx))
                del lq[:idx + 1]
        def lds_rd(f):
            sl = f % NR
            if sl >= NBW and f < 180:
                vwait(('w', f))
                r = WT + 4 * (f % 4)
                k("ds_read_b128 v[%d:%d], v251 offset:%d" % (r, r + 3, (sl - NBW) * 1024))
                lq.append(('w', f))
        for i in range(5):
            if i == 4:
                k("s_cmp_ge_u32 s35, 2")
                k("s_cbranch_scc1 %s" % lskip)
            A = 20 + 16 * (i & 1)
            acc = "v[%d:%d]" % (A, A + 15)
            for ks in range(36):
                f = i * 36 + ks
                sl = f % NR
                lds_rd(f + PDL)
                if sl < NBW:
                    vwait(('w', f))
                    r = WR + 4 * sl
                    wsrc = "a[%d:%d]" % (r, r + 3)
                else:
                    lwait(('w', f))
                    r = WT + 4 * (f % 4)
                    wsrc = "v[%d:%d]" % (r, r + 3)
                if i == 0:
                    lwait(('fa', ks))
                k("v_mfma_f32_32x32x16_bf16 %s, %s, v[%d:%d], %s" % (acc, wsrc, FA + 4 * ks, FA + 4 * ks + 3, "0" if ks == 0 else acc))
                if f + NR < 180:
                    ld_w(f + NR)
                    q.append(('w', f + NR))
                if i and ks == 2:
                    B = 20 + 16 * ((i - 1) & 1)
                    for j in range(8):
                        k("v_cvt_pk_bf16_f32 v%d, v%d, v%d" % (52 + j, B + 2 * j, B + 2 * j + 1))
                    k("buffer_store_dwordx4 v[52:55], v1, s[12:15], s16 offen")
                    k("buffer_store_dwordx4 v[56:59], v1, s[12:15], s16 offen offset:1024")
                    k("s_add_u32 s16, s16, 8192")
                    q += ['s', 's']
        def tail(B):
            k("s_nop 15")
            for j in range(8):
                k("v_cvt_pk_bf16_f32 v%d, v%d, v%d" % (52 + j, B + 2 * j, B + 2 * j + 1))
            k("buffer_store_dwordx4 v[52:55], v1, s[12:15], s16 offen")
            k("buffer_store_dwordx4 v[56:59], v1, s[12:15], s16 offen offset:1024")
            k("s_waitcnt vmcnt(0)")
        tail(20)
        stamp(k)
        k("s_endpgm")
        k.label(lskip)
        tail(36)
        stamp(k)
        return
    k("""
    v_lshrrev_b32 v6, 5, v0
    v_mul_u32_u24 v7, 1168, v3
    v_lshl_add_u32 v7, v6, 4, v7
    v_lshlrev_b32 v8, 4, v3
    v_lshl_add_u32 v8, v6, 9, v8
    s_mul_i32 s16, s33, 36864
    """)
    for j in range(9):
        k("ds_read_b128 v[%d:%d], v7 offset:%d" % (20 + 4 * j, 23 + 4 * j, 128 * j))
    for j in range(9):
        k("s_waitcnt lgkmcnt(%d)" % (8 - j))
        if j:
            k("s_add_u32 s16, s16, 4096")
        k("buffer_store_dwordx4 v[%d:%d], v8, s[12:15], s16 offen" % (20 + 4 * j, 23 + 4 * j))


def gen_g3():
    k = K("g3_kernel")
    lend = k.newlabel("end")
    latt = k.newlabel("att")
    k("s_cmp_ge_u32 s2, 256")
    k("s_cbranch_scc1 %s" % lend)
    k.load_ptr(P_WS, 40)
    k.load_ptr(IN_W2, 44)
    k("s_sub_u32 s33, s2, 192")
    if NKC == 8:
        k("""
        s_and_b32 s30, s2, 7
        s_bfe_u32 s31, s2, 0x30003
        s_lshr_b32 s32, s2, 6
        """)
        RB, MB = 2, 8
    else:
        k("""
        s_and_b32 s30, s2, 3
        s_bfe_u32 s31, s2, 0x30003
        s_bfe_u32 s32, s2, 0x10002
        s_lshl_b32 s32, s32, 3
        s_add_u32 s31, s31, s32
        s_lshr_b32 s32, s2, 6
        """)
        RB, MB = 1, 4
    k("s_waitcnt lgkmcnt(0)")
    stamp_init(k, 40)
    k("s_cmp_ge_u32 s2, 192")
    k("s_cbranch_scc1 %s" % latt)
    k.srd(4, 40, S * F * 2, WS_H)
    k("s_mul_i32 s28, s31, %d" % (MB * 288 * 1024))
    k("s_mul_i32 s37, s30, %d" % (36864 * 8 // NKC))
    k("s_add_u32 s28, s28, s37")
    k.srd(8, 44, F * D * 2)
    k("s_mov_b32 s16, s10")
    k("s_mul_i32 s20, s30, %d" % (576 * 1152 * 8 // NKC))
    k("s_mul_i32 s37, s32, %d" % (6 * 64))
    k("s_add_u32 s20, s20, s37")
    k.srd(12, 40, NKC * PART_STRIDE, WS_PART)
    k("s_mul_i32 s29, s30, %d" % PART_STRIDE)
    k("s_mul_i32 s37, s31, %d" % (MB * 18 * 4096))
    k("s_add_u32 s29, s29, s37")
    k("s_mul_i32 s37, s32, %d" % (6 * 4096))
    k("s_add_u32 s29, s29, s37")
    k("s_mov_b32 s17, 5")
    e = Eng(k, 1, 'f32', 288 * 1024, D * 2, 18 * 4096, ofrag=True, RB=RB)
    e.run("y")
    k("s_branch %s" % lend)
    k.label(latt)
    gen_attn_part(k)
    k.label(lend)
    return k


def gen_fin():
    k = K("fin_kernel")
    lend = k.newlabel("end")
    k("s_cmp_ge_u32 s2, 1152")
    k("s_cbranch_scc1 %s" % lend)
    k.load_ptr(P_WS, 40)
    k.load_ptr(IN_X, 42)
    k.load_ptr(IN_B2, 44)
    k.load_ptr(P_OUT, 46)
    NB = 16
    FA, FW, ACC, P, SM, XR, BR = 16, 80, 144, 160, 224, 240, 248
    k("""
    v_and_b32 v1, 63, v0
    s_and_b32 s30, s2, 7
    s_lshr_b32 s31, s2, 3
    s_mul_i32 s32, s31, 57
    s_lshr_b32 s32, s32, 10
    s_mul_i32 s33, s32, 18
    s_sub_u32 s33, s31, s33
    s_lshl_b32 s30, s30, 3
    s_add_u32 s30, s30, s32
    v_lshlrev_b32 v2, 4, v1
    v_lshrrev_b32 v3, 5, v1
    v_and_b32 v4, 31, v1
    """)
    k("s_waitcnt lgkmcnt(0)")
    k.srd(4, 40, S * D * 2, WS_O)
    k.srd(8, 40, D * D * 2, WS_WOT)
    k.srd(12, 40, NKC * PART_STRIDE, WS_PART)
    k.srd(16, 42, S * D * 2)
    k.srd(20, 44, D * 2)
    k.srd(48, 46, S * D * 2)
    k("s_mul_i32 s34, s30, 36864")
    k("s_mul_i32 s35, s33, 36864")
    k("s_mul_i32 s36, s30, %d" % (18 * 4096))
    k("s_lshl_b32 s37, s33, 12")
    k("s_add_u32 s36, s36, s37")
    vm = VM(k)
    soff = {}

    def ld_ab(ks):
        if ks % 4 == 0 and ks:
            k("s_add_u32 s34, s34, 4096")
            k("s_add_u32 s35, s35, 4096")
        sl = ks % NB
        vm.issue("buffer_load_dwordx4 v[%d:%d], v2, s[4:7], s34 offen offset:%d" % (FA + 4 * sl, FA + 4 * sl + 3, (ks % 4) * 1024), ('a', ks))
        vm.issue("buffer_load_dwordx4 v[%d:%d], v2, s[8:11], s35 offen offset:%d" % (FW + 4 * sl, FW + 4 * sl + 3, (ks % 4) * 1024), ('w', ks))

    def ld_p(sp):
        for g in range(4):
            r = P + 16 * (sp % 4) + 4 * g
            vm.issue("buffer_load_dwordx4 v[%d:%d], v2, s[12:15], s36 offen offset:%d" % (r, r + 3, g * 1024), ('p', sp))
        k("s_add_u32 s36, s36, %d" % PART_STRIDE)

    if G2A:
        k("s_lshr_b32 s34, s36, 1")
        vm.issue("buffer_load_dwordx4 v[%d:%d], v2, s[4:7], s34 offen" % (FA, FA + 3), 's')
        vm.issue("buffer_load_dwordx4 v[%d:%d], v2, s[4:7], s34 offen offset:1024" % (FA + 4, FA + 7), 's')
    else:
        for ks in range(NB):
            ld_ab(ks)
    for sp in range(4):
        ld_p(sp)
    k("""
    s_lshl_b32 s38, s30, 5
    v_add_u32 v5, s38, v4
    s_movk_i32 s39, 1152
    v_mul_lo_u32 v5, v5, s39
    s_lshl_b32 s38, s33, 6
    v_lshlrev_b32 v6, 3, v3
    v_add_u32 v6, s38, v6
    v_add_u32 v7, v5, v6
    v_lshl_add_u32 v8, v3, 5, v5
    v_add_u32 v8, s38, v8
    """)
    for g in range(4):
        vm.issue("buffer_load_dwordx2 v[%d:%d], v7, s[16:19], 0 offen offset:%d" % (XR + 2 * g, XR + 2 * g + 1, 16 * g), 'x')
        vm.issue("buffer_load_dwordx2 v[%d:%d], v6, s[20:23], 0 offen offset:%d" % (BR + 2 * g, BR + 2 * g + 1, 16 * g), 'x')
    acc = "v[%d:%d]" % (ACC, ACC + 15)
    for ks in range(36):
        sl = ks % NB
        if G2A:
            if ks != NB - 1:
                continue
            vm.wait('s')
            for j in range(8):
                k("v_lshlrev_b32 v%d, 16, v%d" % (ACC + 2 * j, FA + j))
                k("v_and_b32 v%d, 0xffff0000, v%d" % (ACC + 2 * j + 1, FA + j))
        vm.wait(('w', ks))
        if not G2A:
          k("v_mfma_f32_32x32x16_bf16 %s, v[%d:%d], v[%d:%d], %s" % (acc, FW + 4 * sl, FW + 4 * sl + 3, FA + 4 * sl, FA + 4 * sl + 3, "0" if ks == 0 else acc))
        if ks + NB < 36 and not G2A:
            ld_ab(ks + NB)
        if ks == NB - 1:
            vm.wait(('p', 3))
            for r in range(16):
                k("v_add_f32 v%d, v%d, v%d" % (SM + r, P + r, P + 16 + r))
                k("v_add_f32 v%d, v%d, v%d" % (SM + r, SM + r, P + 32 + r))
                k("v_add_f32 v%d, v%d, v%d" % (SM + r, SM + r, P + 48 + r))
            for sp in range(4, NKC):
                ld_p(sp)
    if NKC == 8:
        vm.wait(('p', 7))
        for r in range(16):
            for sp in range(4):
                k("v_add_f32 v%d, v%d, v%d" % (SM + r, SM + r, P + 16 * sp + r))
    elif not G2A:
        k("s_nop 15")
    vm.wait('x')
    T = 10
    OUTP = P
    pos = {0: 0, 2: 2, 1: 4, 3: 6}
    for g in range(4):
        for i in range(4):
            y = SM + 4 * g + i
            a = ACC + 4 * g + i
            rne_bf16(k, y, y, T)
            src = BR + 2 * g + i // 2
            k(("v_lshlrev_b32 v%d, 16, v%d" if i % 2 == 0 else "v_and_b32 v%d, 0xffff0000, v%d") % (T + 1, src))
            k("v_add_f32 v%d, v%d, v%d" % (y, y, T + 1))
            rne_bf16(k, y, y, T)
            k("v_mul_f32 v%d, 0xbfb8aa3b, v%d" % (T + 1, y))
            k("v_exp_f32 v%d, v%d" % (T + 1, T + 1))
            k("s_nop 0")
            k("v_add_f32 v%d, 1.0, v%d" % (T + 1, T + 1))
            k("v_rcp_f32 v%d, v%d" % (T + 1, T + 1))
            k("s_nop 0")
            k("v_mul_f32 v%d, v%d, v%d" % (y, y, T + 1))
            rne_bf16(k, y, y, T)
            if not G2A:
                rne_bf16(k, a, a, T)
            k("v_mul_f32 v%d, v%d, v%d" % (y, y, a))
            rne_bf16(k, y, y, T)
            src = XR + 2 * g + i // 2
            k(("v_lshlrev_b32 v%d, 16, v%d" if i % 2 == 0 else "v_and_b32 v%d, 0xffff0000, v%d") % (T + 1, src))
            k("v_add_f32 v%d, v%d, v%d" % (y, y, T + 1))
        k("v_cvt_pk_bf16_f32 v%d, v%d, v%d" % (OUTP + pos[g], SM + 4 * g, SM + 4 * g + 1))
        k("v_cvt_pk_bf16_f32 v%d, v%d, v%d" % (OUTP + pos[g] + 1, SM + 4 * g + 2, SM + 4 * g + 3))
    k("s_nop 1")
    for j in range(2):
        k("v_permlane32_swap_b32 v%d, v%d" % (OUTP + j, OUTP + 2 + j))
        k("v_permlane32_swap_b32 v%d, v%d" % (OUTP + 4 + j, OUTP + 6 + j))
    k("buffer_store_dwordx4 v[%d:%d], v8, s[48:51], 0 offen" % (OUTP, OUTP + 3))
    k("buffer_store_dwordx4 v[%d:%d], v8, s[48:51], 0 offen offset:16" % (OUTP + 4, OUTP + 7))
    k.label(lend)
    return k


def main():
    kerns = []
    launches = []
    k, v, n = gen_ln2(); kerns.append(k.text(v)); launches.append((k.name, n, 0))
    import gen2
    sk = os.environ.get('STAMPK', 'g3')
    gen2.STAMP = STAMP and sk == 'g1'
    k = gen_g1c() if os.environ.get("G1CB", "2") == "2" else gen_g1(int(os.environ.get('WC', '2')), hfrag=True)
    kerns.append(k.text(512, accum=256)); launches.append((k.name, 256, LDS_TOTAL))
    gen2.STAMP = STAMP and sk == 'g3'
    k = gen_g3(); kerns.append(k.text(512, accum=256)); launches.append((k.name, 256, LDS_TOTAL))
    k = gen_fin(); kerns.append(k.text(256, accum=256)); launches.append((k.name, 1152, 0, 64))
    out = []
    for L in launches:
        n, g, lds = L[:3]
        bs = L[3] if len(L) > 3 else 256
        out.append("; @launch kernel=%s grid=(%d,1,1) block=(%d,1,1) lds=%d" % (n, g, bs, lds))
    out.append('.amdgcn_target "amdgcn-amd-amdhsa--gfx950"')
    out.append(".text")
    for t, d in kerns:
        out.append(t)
    out.append('.section .rodata,"a"')
    for t, d in kerns:
        out.append(".p2align 6")
        out.append(d)
    fn = sys.argv[1] if len(sys.argv) > 1 else "v3.s"
    txt = "\n".join(out) + "\n"
    if not os.environ.get("NOSC1"):
        lines = txt.split("\n")
        mode = False
        for i, l in enumerate(lines):
            if l.startswith("hpart") or l.startswith("g3_kernel:") or l.startswith("ln_kernel:"):
                mode = True
            if l.startswith("fin_kernel:") or l.startswith("g1_kernel:"):
                mode = False
            if mode and "buffer_store" in l:
                lines[i] = l + " sc1"
        txt = "\n".join(lines)
    open(fn, "w").write(txt)


if __name__ == "__main__":
    main()
```

```python
import sys
src, dst = sys.argv[1], sys.argv[2]
L = open(src).read().split('\n')
def find(s, a=0):
    for i in range(a, len(L)):
        if L[i].strip() == s:
            return i
    raise SystemExit("missing " + s)
blk0 = ["v_lshrrev_b32 v2, 3, v1", "v_mul_u32_u24 v52, 1152, v2", "v_and_b32 v3, 7, v1", "v_lshl_add_u32 v52, v3, 4, v52",
        "s_mul_i32 s84, s35, 73728", "s_add_u32 s84, s84, s28", "s_mul_i32 s85, s36, 18432", "s_add_u32 s84, s84, s85",
        "s_add_u32 s85, s84, 9216", "s_add_u32 s86, s84, 36864", "s_add_u32 s87, s84, 46080"]
g1 = find("g1_kernel:")
hp = [i for i, l in enumerate(L) if l.startswith("hpart_g1_kernel")][0]
loads = None
for start in (hp, g1):
    i = find(blk0[0], start)
    assert [x.strip() for x in L[i:i + len(blk0)]] == blk0, L[i:i + len(blk0)]
    j = i + len(blk0)
    n = 0
    while L[j + n].strip().startswith("buffer_load_dwordx4") and "v52, s[72:75]" in L[j + n]:
        n += 1
    ld = L[j:j + n]
    assert loads is None or loads == ld
    loads = ld
    br = start if start == hp else find("s_cbranch_scc1 " + L[hp][:-1], g1) + 1
    for x in L[br:i]:
        assert not any(t in x for t in ("buffer_", "global_", "ds_", "s_waitcnt", "s_barrier", "v52", "v2,", "v3,", "s84", "s85", "s86", "s87")), x
    del L[i:j + n]
w = find("s_waitcnt lgkmcnt(0)", g1)
pre = ["v_lshrrev_b32 v17, 6, v0", "v_and_b32 v1, 63, v0", "v_readfirstlane_b32 s26, v17",
       "v_lshrrev_b32 v2, 3, v1", "v_mul_u32_u24 v52, 1152, v2", "v_and_b32 v3, 7, v1", "v_lshl_add_u32 v52, v3, 4, v52",
       "s_lshr_b32 s84, s26, 1", "s_mul_i32 s84, s84, 73728", "s_add_u32 s84, s84, s28", "s_and_b32 s85, s26, 1",
       "s_mul_i32 s85, s85, 18432", "s_add_u32 s84, s84, s85",
       "s_add_u32 s85, s84, 9216", "s_add_u32 s86, s84, 36864", "s_add_u32 s87, s84, 46080"]
assert [x.strip() for x in L[w + 1:w + 5]] == ["s_mov_b32 s72, s72", "s_mov_b32 s73, s73", "s_mov_b32 s74, 0x240000", "s_mov_b32 s75, 0x00020000"]
new = ["    " + x for x in pre] + [L[w + 3], L[w + 4], L[w], L[w + 1], L[w + 2]] + loads
L[w:w + 5] = new
open(dst, 'w').write('\n'.join(L))
print("moved", len(loads), "loads")
```
